```python
import torch

def _softmax(x, axis=-1):
    return torch.softmax(x, dim=axis)
def _gelu(x):
    return torch.nn.functional.gelu(x, approximate="tanh")
def _silu(x):
    return torch.nn.functional.silu(x)
def _sigmoid(x):
    return torch.sigmoid(x)
def _layernorm(x, axis=-1, eps=1e-5):
    m = x.mean(dim=axis, keepdim=True)
    v = x.var(dim=axis, keepdim=True, unbiased=False)
    return (x - m) / torch.sqrt(v + eps)
def _scatter_add(tgt, idx, src, axis=0):
    return tgt.clone().index_add_(axis, idx, src)
def _segment_sum(src, seg, n):
    out = torch.zeros((n,) + src.shape[1:], dtype=src.dtype)
    return out.index_add_(0, seg, src)
def _pad(x, pw):
    flat = tuple(v for pair in reversed(pw) for v in pair)
    return torch.nn.functional.pad(x, flat)

kernel_name = 'standalone__mha_softmax__near_ridge'

def setup_inputs():

    _w = (lambda a: (lambda t: t.to(torch.bfloat16) if t.is_floating_point() else t)(torch.as_tensor(a)))
    B, H, Sq, Sk, D = 8, 32, 512, 512, 128
    return {
        "q": _w((lambda *s: torch.randn(*s, dtype=torch.bfloat16) * 0.8)(B, H, Sq, D)),
        "k": _w((lambda *s: torch.randn(*s, dtype=torch.bfloat16) * 0.8)(B, H, Sk, D)),
        "v": _w((lambda *s: torch.randn(*s, dtype=torch.bfloat16) * 0.05)(B, H, Sk, D)),
    }

def reference(q, k, v):
    scale = q.shape[-1] ** -0.5
    scores = torch.einsum("bhqd,bhkd->bhqk", q, k) * scale
    p = _softmax(scores, axis=-1)
    return torch.einsum("bhqk,bhkd->bhqd", p, v)
```

```python
import re


def regs(spec):
    if spec is None:
        return set()
    spec = str(spec).strip()
    if spec.startswith('-'):
        spec = spec[1:]
    m = re.fullmatch(r'([vas])\[(\d+):(\d+)\]', spec)
    if m:
        return {f'{m.group(1)}{i}' for i in range(int(m.group(2)), int(m.group(3)) + 1)}
    m = re.fullmatch(r'([vas])(\d+)', spec)
    if m:
        return {spec}
    if spec in ('vcc', 'm0', 'exec', 'scc'):
        return {spec}
    return set()


def R(f, base, n=1):
    return f'{f}{base}' if n == 1 else f'{f}[{base}:{base + n - 1}]'


class I:
    __slots__ = ('text', 'kind', 'wr', 'rd', 'rdc', 'tag', 'states', 'cost')

    def __init__(self, text, kind, wr=(), rd=(), rdc=(), tag=None, states=1, cost=None):
        self.text = text
        self.kind = kind
        self.wr = set().union(*[regs(x) for x in wr]) if wr else set()
        self.rd = set().union(*[regs(x) for x in rd]) if rd else set()
        self.rdc = set().union(*[regs(x) for x in rdc]) if rdc else set()
        self.tag = tag
        self.states = states
        if cost is None:
            cost = {'trans': 2, 'mfma': 0, 'label': 0, 'comment': 0}.get(kind, 1)
        self.cost = cost


def mfma32(d, a, b, c):
    return I(f'v_mfma_f32_32x32x16_bf16 {d}, {a}, {b}, {c}', 'mfma', [d], [a, b, c], [c])


def mfma16(d, a, b, c):
    i = I(f'v_mfma_f32_16x16x32_bf16 {d}, {a}, {b}, {c}', 'mfma', [d], [a, b, c], [c])
    i.tag = 'p4'
    return i


def valu(op, d, *src, mods='', extra_wr=(), extra_rd=()):
    kind = 'trans' if re.match(r'v_(exp|log|rcp|rsq|sqrt|sin|cos)_', op) else 'valu'
    if op.startswith('v_permlane'):
        return I(f'{op} {d}, {src[0]}', 'perm', [d, src[0]], [d, src[0]])
    rd = list(src) + list(extra_rd)
    if op.startswith('v_fmac') or op.startswith('v_writelane'):
        rd.append(d)
    t = f'{op} {d}, ' + ', '.join(str(s) for s in src)
    if mods:
        t += ' ' + mods
    return I(t, kind, [d] + list(extra_wr), rd)


def salu(op, d, *src):
    t = f'{op} {d}' + ''.join(f', {s}' for s in src)
    if op.startswith('s_cmp'):
        return I(t, 'salu', ['scc'], [d] + list(src))
    return I(t, 'salu', [d, 'scc'], list(src))


def ds_read(op, d, addr, off, tag=None):
    assert 0 <= off < 65536, off
    return I(f'{op} {d}, {addr} offset:{off}', 'ds', [d], [addr], tag=tag)


def ds_write(op, addr, data, off, tag=None):
    assert 0 <= off < 65536, off
    return I(f'{op} {addr}, {data} offset:{off}', 'ds', [], [addr, data], tag=tag)


def bload(op, d, voff, srd, soff, off=0, flags='', tag=None):
    assert 0 <= off < 4096, off
    t = f'{op} {d}, {voff}, {srd}, {soff} offen offset:{off}' + (' ' + flags if flags else '')
    rd = [voff, srd, soff]
    if 'd16' in op:
        rd.append(d)
    return I(t, 'vmem', [d], rd, tag=tag)


def dma(voff, srd, soff, off=0, flags='', tag=None):
    assert 0 <= off < 4096, off
    t = f'buffer_load_dwordx4 {voff}, {srd}, {soff} offen offset:{off}' + (' ' + flags if flags else '') + ' lds'
    return I(t, 'dma', [], [voff, srd, soff, 'm0'], tag=tag)


def bstore(op, data, voff, srd, soff, off=0, flags='', tag=None):
    assert 0 <= off < 4096, off
    t = f'{op} {data}, {voff}, {srd}, {soff} offen offset:{off}' + (' ' + flags if flags else '')
    i = I(t, 'store', [], [data, voff, srd, soff], tag=tag)
    i.rdc = regs(data)
    return i


def nop(n):
    return I(f's_nop {n}', 'nop', states=n + 1, cost=n + 1)


def raw(text, kind='salu', wr=(), rd=(), cost=None):
    return I(text, kind, wr, rd, cost=cost)


def label(name):
    return I(f'{name}:', 'label', states=0)


def comment(t):
    return I(f'; {t}', 'comment', states=0)


VAL = ('valu', 'trans', 'perm')


def required_states(p, c):
    need = 0
    pv = p.kind in VAL
    cv = c.kind in VAL
    vw = {r for r in p.wr if r[0] in 'va' and r not in ('vcc',)}
    sw = {r for r in p.wr if r == 'vcc' or (r[0] == 's' and r != 'scc')}
    if p.kind == 'mfma':
        base = 8 if p.tag == 'p4' else 12
        if c.kind == 'mfma':
            ab = c.rd - c.rdc
            if vw & ab:
                need = max(need, base)
            ov = vw & c.rdc
            if ov and (c.rdc != p.wr or c.tag != p.tag):
                need = max(need, base - 2)
        elif cv or c.kind in ('ds', 'vmem', 'dma', 'store'):
            if vw & (c.rd | c.wr):
                need = max(need, base)
        if cv and (p.rdc & c.wr):
            need = max(need, 3 if p.tag == 'p4' else 7)
    if pv:
        if c.kind == 'mfma' and vw & c.rd:
            need = max(need, 2)
        if c.kind == 'perm' and vw & c.rd:
            need = max(need, 2)
        if p.kind == 'trans' and cv and c.kind != 'trans' and vw & c.rd:
            need = max(need, 1)
        if cv and (c.text.startswith('v_readfirstlane') or c.text.startswith('v_readlane')) and vw & c.rd:
            need = max(need, 1)
        if c.kind in ('vmem', 'dma', 'store') and sw & c.rd:
            need = max(need, 5)
        if cv and sw & c.rd:
            need = max(need, 2)
        if c.kind == 'salu' and sw & c.rd:
            need = max(need, 1)
    if p.kind == 'salu' and 'm0' in p.wr and c.kind == 'dma':
        need = max(need, 1)
    if p.kind == 'store' and (p.rdc & c.wr):
        need = max(need, 2)
    return need


def check_hazards(ins, window=24):
    bad = 0
    for j, c in enumerate(ins):
        if c.kind in ('label', 'comment'):
            continue
        dist = 0
        for i in range(j - 1, max(-1, j - 1 - 4 * window), -1):
            p = ins[i]
            if dist >= window:
                break
            need = required_states(p, c)
            if need > dist:
                print(f'HAZARD: need {need} have {dist}: [{i}] {p.text}  ->  [{j}] {c.text}')
                bad += 1
            dist += p.states
    return bad


def fix_hazards(ins, window=24):
    out = []
    for c in ins:
        if c.kind not in ('label', 'comment'):
            dist = 0
            short = 0
            for p in reversed(out[-4 * window:]):
                if dist >= window:
                    break
                need = required_states(p, c)
                short = max(short, need - dist)
                dist += p.states
            while short > 0:
                k = min(short, 16)
                out.append(nop(k - 1))
                short -= k
        out.append(c)
    return out
```

```python
import argparse
import math
import struct
import sys

from asmlib import *

NAME = 'standalone__mha_softmax__near_ridge'
HEADER = open('standalone__mha_softmax__near_ridge.s.ref').read().split('; Override')[0]

TENSOR_BYTES = 8 * 32 * 512 * 128 * 2
HEAD_BYTES = 512 * 256
TILE_BYTES = 32 * 256
NT = 32


def f32bits(x):
    return struct.unpack('<I', struct.pack('<f', x))[0]


C_SCALE = math.log2(math.e) / math.sqrt(128.0)
L_LIMIT = 2.0 ** 40

SQ, SK, SV, SO = 's[4:7]', 's[8:11]', 's[12:15]', 's[16:19]'
S_C, S_W, S_WB, S_T = 's20', 's21', 's22', 's23'
S_ROW = [['s24', 's25'], ['s26', 's27']]
S_FLAG = ['s[28:29]', 's[30:31]']
S_TILE = 32
S_STAMP = 64

V_QO, V_DK, V_DV = 'v1', 'v2', 'v3'
V_AK = [['v4', 'v5'], ['v6', 'v7']]
V_AV = ['v8', 'v9']
V_L = [['v10', 'v11'], ['v24', 'v25']]
V_MC = [['v12', 'v13'], ['v26', 'v27']]
V_RL = [14, 16]
V_T = ['v18', 'v19', 'v20', 'v21', 'v22', 'v23']
P_BASE, S_BASE, O_BASE = 32, 64, 128
Q_BASE = [0, 64]
KF_BASE = [128, 192]
VF_BASE = 160


def Sreg(n, qt, r=0, cnt=1):
    return R('v', S_BASE + (n & 1) * 32 + qt * 16 + r, cnt)


def Preg(n, qt, t, m=0, cnt=1):
    return R('v', P_BASE + (n & 1) * 16 + qt * 8 + t * 4 + m, cnt)


def Oreg(qt, dt, r=0, cnt=16):
    return R('v', O_BASE + (qt * 4 + dt) * 16 + r, cnt)


def Qreg(head, qt, s):
    return R('a', Q_BASE[head] + (qt * 8 + s) * 4, 4)


def Kf(n, s):
    return R('a', KF_BASE[n & 1] + s * 4, 4)


def Vf(t, dt, u=None):
    b = VF_BASE + (dt * 2 + t) * 4
    return R('a', b, 4) if u is None else R('a', b + 2 * u, 2)


class Gen:
    def __init__(self, o):
        self.o = o
        self.ins = []
        self.vm = []
        self.R = o.ring
        self.half = self.R // 2 * TILE_BYTES
        self.vbase = self.R * TILE_BYTES
        self.landed = set()
        self.slot = {}
        self.reads_open = set()
        self.done_reading = set()
        self.next = {'K': 0, 'V': 0}
        self.nstamp = 0
        self.overflow = []

    def emit(self, *xs):
        for x in xs:
            if isinstance(x, (list, tuple)):
                self.emit(*x)
                continue
            if x.kind in ('vmem', 'dma', 'store'):
                self.vm.append(x.tag)
            if x.kind == 'ds' and x.tag is not None:
                assert x.tag in self.landed, f'read of {x.tag} before it is visible'
                self.reads_open.add(x.tag)
            self.ins.append(x)

    def vm_needed(self, tags):
        last = -1
        for i, t in enumerate(self.vm):
            if t in tags:
                last = i
        for t in tags:
            assert t in self.vm, f'{t} never issued'
        return min(63, len(self.vm) - 1 - last)

    def wait(self, tags=(), lgkm=None):
        parts = []
        if tags:
            parts.append(f'vmcnt({self.vm_needed(tags)})')
        if lgkm is not None:
            parts.append(f'lgkmcnt({lgkm})')
        return raw('s_waitcnt ' + ' '.join(parts), 'wait')

    def barrier_mark(self, tiles, lgkm_clean):
        self.landed |= set(tiles)
        if lgkm_clean:
            self.done_reading |= self.reads_open
            self.reads_open = set()

    def stamp(self):
        if not self.o.stamps:
            return []
        assert self.nstamp < 15
        r = R('s', S_STAMP + 2 * self.nstamp, 2)
        self.nstamp += 1
        return [raw(f's_memtime {r}', 'smem', [r])]

    def can_dma(self, kind):
        n = self.next[kind]
        if n >= NT:
            return False
        held = self.slot.get((kind, n % self.R))
        return held is None or (kind, held) in self.done_reading

    def dma_tile(self, kind):
        n = self.next[kind]
        assert self.can_dma(kind)
        self.next[kind] = n + 1
        self.slot[(kind, n % self.R)] = n
        base = (n % self.R) * TILE_BYTES + (self.vbase if kind == 'V' else 0)
        voff, srd = (V_DK, SK) if kind == 'K' else (V_DV, SV)
        so = f's{S_TILE + n}'
        fl = self.o.dma_flags
        return [salu('s_add_u32', 'm0', S_WB, base),
                dma(voff, srd, so, 0, fl, tag=(kind, n)),
                dma(voff, srd, so, 1024, fl, tag=(kind, n))]

    def k_reads(self, n):
        slot = n % self.R
        hi = 1 if slot * TILE_BYTES >= self.half else 0
        base = slot * TILE_BYTES - hi * self.half
        return [ds_read('ds_read_b128', Kf(n, s), V_AK[hi][s & 1], base + (s >> 1) * 256, tag=('K', n))
                for s in range(8)]

    def v_reads(self, n):
        slot = n % self.R
        hi = 1 if slot * TILE_BYTES >= self.half else 0
        base = slot * TILE_BYTES - hi * self.half
        out = []
        for dt in range(4):
            for t in range(2):
                for u in range(2):
                    out.append(ds_read('ds_read_b64_tr_b16', Vf(t, dt, u), V_AV[hi],
                                       base + (4 * t + 2 * u) * 1024 + dt * 256, tag=('V', n)))
        return out

    def q_load(self, head, qt, s):
        return bload('buffer_load_dwordx4', Qreg(head, qt, s), V_QO, SQ, S_ROW[head][qt], s * 32,
                     self.o.q_flags, tag=('Q', head, qt))

    def qk(self, n):
        h = n // 16
        return [mfma32(Sreg(n, qt, 0, 16), Kf(n, s), Qreg(h, qt, s), Sreg(n, qt, 0, 16) if s else '0')
                for qt in range(2) for s in range(8)]

    def pv(self, n):
        first = n % 16 == 0
        return [mfma32(Oreg(qt, dt), Vf(t, dt), Preg(n, qt, t, 0, 4), '0' if (first and t == 0) else Oreg(qt, dt))
                for dt in range(4) for t in range(2) for qt in range(2)]

    def op_fma(self, n, e):
        qt, r = divmod(e, 16)
        x = Sreg(n, qt, r)
        return valu('v_fma_f32', x, x, S_C, V_MC[n // 16][qt])

    def op_exp(self, n, e):
        qt, r = divmod(e, 16)
        x = Sreg(n, qt, r)
        return valu('v_exp_f32' + self.o.e64, x, x)

    def op_add(self, n, e):
        qt, r = divmod(e, 16)
        x = Sreg(n, qt, r)
        l = V_L[n // 16][qt]
        if n % 16 == 0 and r == 0:
            return valu('v_mov_b32' + self.o.e64, l, x)
        return valu('v_add_f32' + self.o.e64, l, l, x)

    def op_cvt(self, n, e):
        qt, r = divmod(e, 16)
        t, i = divmod(r, 8)
        return valu('v_cvt_pk_bf16_f32', Preg(n, qt, t, i // 2), Sreg(n, qt, r - 1), Sreg(n, qt, r))

    def max_chain(self, n):
        h = n // 16
        out = []
        m = [V_T[0], V_T[1]]
        c = [V_T[2], V_T[3]]
        for k in range(8):
            for qt in range(2):
                if k == 0:
                    out.append(valu('v_max3_f32', m[qt], Sreg(n, qt, 0), Sreg(n, qt, 1), Sreg(n, qt, 2)))
                elif k < 7:
                    out.append(valu('v_max3_f32', m[qt], m[qt], Sreg(n, qt, 2 * k + 1), Sreg(n, qt, 2 * k + 2)))
                else:
                    out.append(valu('v_max_f32', m[qt], m[qt], Sreg(n, qt, 15)))
        out += [valu('v_mov_b32', c[0], m[0]), valu('v_mov_b32', c[1], m[1]), nop(0),
                valu('v_permlane32_swap_b32', c[0], m[0]), valu('v_permlane32_swap_b32', c[1], m[1]),
                valu('v_max_f32', m[0], m[0], c[0]), valu('v_max_f32', m[1], m[1], c[1]),
                valu('v_mul_f32', V_MC[h][0], S_C, m[0], mods=''), valu('v_mul_f32', V_MC[h][1], S_C, m[1]),
                valu('v_sub_f32', V_MC[h][0], '0', V_MC[h][0]), valu('v_sub_f32', V_MC[h][1], '0', V_MC[h][1])]
        return out

    def sm_stream(self, n):
        out = []

        def rnd(g):
            r = []
            if 0 <= g < 32 and n < NT:
                r.append(self.op_fma(n, g))
            for lag, f in ((1, self.op_exp), (2, self.op_add)):
                e, m = g - lag, n
                if e < 0:
                    e, m = e + 32, n - 1
                if 0 <= m < NT and (m < n or n < NT):
                    r.append(f(m, e))
                    if lag == 2 and e % 2 == 1:
                        r.append(self.op_cvt(m, e))
            return r

        if n < NT and n % 16 == 0:
            for g in (0, 1):
                out += [x for x in rnd(g) if not self.is_of_tile(x, n)]
            out += self.max_chain(n)
            for g in range(32):
                out += [x for x in rnd(g) if self.is_of_tile(x, n)]
        else:
            for g in range(32 if n < NT else 2):
                out += rnd(g)
        if self.o.no_valu:
            out = []
        return out

    def is_of_tile(self, x, n):
        mine = regs(Sreg(n, 0, 0, 32))
        return bool(x.rd & mine)

    def l_final(self, h):
        l = V_L[h]
        c = [V_T[2], V_T[3]]
        out = [valu('v_mov_b32', c[0], l[0]), valu('v_mov_b32', c[1], l[1]), nop(0),
               valu('v_permlane32_swap_b32', c[0], l[0]), valu('v_permlane32_swap_b32', c[1], l[1]),
               valu('v_add_f32', l[0], l[0], c[0]), valu('v_add_f32', l[1], l[1], c[1]),
               valu('v_rcp_f32', f'v{V_RL[0]}', l[0]), valu('v_rcp_f32', f'v{V_RL[1]}', l[1]),
               valu('v_add_f32', c[1], l[0], l[1]),
               valu('v_mov_b32', V_T[4], hex(f32bits(L_LIMIT))),
               valu('v_cmp_nlt_f32', 'vcc', c[1], V_T[4]),
               nop(1),
               salu('s_mov_b64', S_FLAG[h], 'vcc')]
        return out

    def epilogue(self, h):
        out = []
        for dt in range(4):
            for qt in range(2):
                b = O_BASE + (qt * 4 + dt) * 16
                rl = R('v', V_RL[qt], 2)
                for half in range(2):
                    for k in range(4):
                        r = b + half * 8 + 2 * k
                        x = I(f'v_pk_mul_f32 {R("v", r, 2)}, {R("v", r, 2)}, {rl} op_sel_hi:[1,0]', 'valu',
                              [R('v', r, 2)], [R('v', r, 2), f'v{V_RL[qt]}'])
                        out.append(x)
                    for k in range(4):
                        r = b + half * 8 + 2 * k
                        out.append(valu('v_cvt_pk_bf16_f32', f'v{b + half * 8 + k}', f'v{r}', f'v{r + 1}'))
                    out.append(bstore('buffer_store_dwordx4', R('v', b + half * 8, 4), V_QO, SO, S_ROW[h][qt],
                                      dt * 64 + half * 32, self.o.st_flags, tag=('O', h)))
        return out

    def weave(self, mf, fixed, vs, name):
        G = len(mf)
        if G == 0:
            for g in sorted(fixed):
                self.emit(fixed[g])
            self.emit(vs)
            return
        oc = [sum(x.cost for x in fixed.get(g, [])) for g in range(G)]
        total = sum(oc) + sum(x.cost for x in vs)
        cap = 6
        while True:
            place = self.pack(G, oc, vs, total, cap)
            if place is not None:
                break
            cap += 1
        if cap > 6:
            self.overflow.append((name, cap, total, G))
        for g in range(G):
            self.emit(mf[g])
            fx = list(fixed.get(g, []))
            pv = list(place[g])
            seq = []
            while fx or pv:
                if fx:
                    seq.append(fx.pop(0))
                if pv:
                    seq.append(pv.pop(0))
            self.emit(seq)

    @staticmethod
    def pack(G, oc, vs, total, cap):
        for eager in (False, True):
            place = [[] for _ in range(G)]
            i = 0
            cum = 0
            for g in range(G):
                c = oc[g]
                cum += oc[g]
                tgt = total * (g + 1) / G
                while i < len(vs) and c + vs[i].cost <= cap and (eager or cum + vs[i].cost <= tgt + 0.99):
                    place[g].append(vs[i])
                    c += vs[i].cost
                    cum += vs[i].cost
                    i += 1
            if i == len(vs):
                return place
        return None

    def prologue(self):
        o = self.o
        e = self.emit
        e(salu('s_cmp_ge_u32', 's2', 256), raw('s_cbranch_scc1 L_end'))
        e(raw('s_load_dwordx8 s[64:71], s[0:1], 0', 'smem', ['s[64:71]']))
        if o.stamps:
            e(raw('s_load_dwordx2 s[100:101], s[0:1], 40', 'smem', ['s[100:101]']))
            e(raw('s_memtime s[98:99]', 'smem', ['s[98:99]']))
            e(raw('s_memrealtime s[94:95]', 'smem', ['s[94:95]']))
        t = V_T
        e(valu('v_lshrrev_b32', t[0], 6, 'v0'),
          valu('v_and_b32', 'v0', 63, 'v0'),
          valu('v_readfirstlane_b32', S_W, t[0]))
        e(salu('s_and_b32', 's3', 's2', 7), salu('s_lshr_b32', S_T, 's2', 3),
          salu('s_lshl_b32', 's3', 's3', 4),
          salu('s_lshr_b32', 's24', S_T, 1), salu('s_add_u32', 's3', 's3', 's24'),
          salu('s_lshl_b32', 's3', 's3', 18),
          salu('s_and_b32', S_T, S_T, 1), salu('s_lshl_b32', S_T, S_T, 16),
          salu('s_lshl_b32', 's24', S_W, 14), salu('s_add_u32', 's24', 's24', S_T),
          salu('s_add_u32', 's24', 's24', 's3'),
          salu('s_add_u32', 's25', 's24', 8192),
          salu('s_add_u32', 's26', 's24', HEAD_BYTES), salu('s_add_u32', 's27', 's25', HEAD_BYTES),
          salu('s_lshl_b32', S_WB, S_W, 11),
          salu('s_mov_b32', S_C, hex(f32bits(C_SCALE))))
        e(valu('v_and_b32', t[0], 31, 'v0'), valu('v_lshrrev_b32', t[1], 5, 'v0'),
          valu('v_lshlrev_b32', V_QO, 8, t[0]), valu('v_lshl_add_u32', V_QO, t[1], 4, V_QO))
        e(valu('v_lshrrev_b32', t[2], 4, 'v0'), valu('v_bfe_u32', t[3], 'v0', 2, 2), valu('v_and_b32', t[4], 3, 'v0'),
          valu('v_lshlrev_b32', V_DV, 6, t[2]), valu('v_lshl_add_u32', V_DV, t[3], 8, V_DV),
          valu('v_add_u32', V_DV, S_WB, V_DV),
          valu('v_xor_b32', t[5], S_W, t[4]),
          valu('v_lshl_add_u32', V_DK, t[5], 4, V_DV), valu('v_lshl_add_u32', V_DV, t[4], 4, V_DV))
        e(raw('s_waitcnt lgkmcnt(0)', 'wait'))
        for srd, src in ((4, 64), (8, 66), (12, 68), (16, 70)):
            e(salu('s_mov_b32', f's{srd}', f's{src}'), salu('s_and_b32', f's{srd + 1}', f's{src + 1}', '0xffff'),
              salu('s_mov_b32', f's{srd + 2}', TENSOR_BYTES), salu('s_mov_b32', f's{srd + 3}', '0x20000'))
        for n in range(NT):
            if n < 4:
                e(salu('s_add_u32', f's{S_TILE + n}', 's3', n * TILE_BYTES))
        e(self.spaced(self.dma_tile('K')))
        for qt in range(2):
            for s in range(8):
                e(self.q_load(0, qt, s))
        e(self.spaced(self.dma_tile('K')))
        for n in range(4, NT):
            e(salu('s_add_u32', f's{S_TILE + n}', 's3', n * TILE_BYTES))
        order = ['K', 'V'] * 16
        for k in order[:o.prefill]:
            if self.can_dma(k):
                e(self.spaced(self.dma_tile(k)))
        e(valu('v_lshrrev_b32', t[2], 2, t[0]), valu('v_lshlrev_b32', t[2], 10, t[2]),
          valu('v_and_b32', t[3], 3, t[0]), valu('v_lshl_add_u32', t[2], t[3], 6, t[2]),
          valu('v_lshrrev_b32', t[3], 3, t[0]), valu('v_xor_b32', t[3], t[3], t[1]),
          valu('v_lshl_add_u32', V_AK[0][0], t[3], 4, t[2]),
          valu('v_xor_b32', V_AK[0][1], 32, V_AK[0][0]),
          valu('v_add_u32', V_AK[1][0], self.half, V_AK[0][0]), valu('v_add_u32', V_AK[1][1], self.half, V_AK[0][1]))
        e(valu('v_lshlrev_b32', t[2], 10, t[1]),
          valu('v_bfe_u32', t[3], 'v0', 2, 2), valu('v_lshl_add_u32', t[2], t[3], 6, t[2]),
          valu('v_bfe_u32', t[3], 'v0', 4, 1), valu('v_lshl_add_u32', t[2], t[3], 5, t[2]),
          valu('v_and_b32', t[3], 1, 'v0'), valu('v_lshl_add_u32', t[2], t[3], 4, t[2]),
          valu('v_bfe_u32', t[3], 'v0', 1, 1), valu('v_lshl_add_u32', t[2], t[3], 3, t[2]),
          valu('v_add_u32', V_AV[0], self.vbase, t[2]), valu('v_add_u32', V_AV[1], self.vbase + self.half, t[2]))

    @staticmethod
    def spaced(d):
        return [d[0], nop(0), d[1], d[2]]

    def body(self):
        o = self.o
        e = self.emit
        bar = raw('s_barrier', 'barrier') if not o.no_barrier else nop(0)
        e(self.wait([('K', 0)]), bar)
        self.barrier_mark([('K', 0)], True)
        e(self.stamp())
        e(self.k_reads(0))
        e(self.wait([('Q', 0, 0)], 0))
        mf = self.qk(0)
        e(mf[:8])
        e(self.wait([('Q', 0, 1), ('K', 1)]), bar)
        self.barrier_mark([('K', 1)], True)
        kr = self.k_reads(1)
        for g in range(8):
            e(mf[8 + g], kr[g])
        qnext = [(qt, s) for qt in range(2) for s in range(8)]
        for n in range(NT + 1):
            e(comment(f'---- sub-iteration {n}'))
            mqk = self.qk(n + 1) if n + 1 < NT else []
            mpv = self.pv(n - 1) if n >= 1 else []
            vs = self.sm_stream(n)
            fixed = {}
            tags = []
            do_bar = n == 0 or (n % 2 == 1 and n < NT)
            if do_bar:
                want = [('K', 2)] if n == 0 else [('V', n - 1), ('K', n + 2), ('V', n), ('K', n + 3)]
                tags = [x for x in want if x[1] < NT]
            if n + 1 == 16:
                tags = tags + [('Q', 1, 0), ('Q', 1, 1)]
            e(self.stamp() if n in (1, 3, 5, 9, 13, 15, 17, 19, 23, 27, 31) else [])
            e(self.wait(tags, 0))
            if do_bar:
                self.barrier_mark([x for x in tags if x[0] != 'Q'], True)
            vr = self.v_reads(n - 1) if n >= 1 else []
            kr = self.k_reads(n + 2) if n + 2 < NT else []
            if o.no_ds:
                vr, kr = [], []
            dm = []
            budget = o.catchup if n < 8 else 1
            for _ in range(budget):
                for k in ('K', 'V'):
                    if self.can_dma(k):
                        dm += self.dma_tile(k)
            if o.no_dma:
                for x in dm:
                    if x.kind == 'dma':
                        self.vm.append(x.tag)
                dm = []
            ql = []
            if 1 <= n <= 14 and qnext and n >= o.qstart:
                for _ in range(2):
                    if qnext:
                        ql.append(self.q_load(1, *qnext.pop(0)))
            if mqk:
                a = {g: [] for g in range(16)}
                if do_bar:
                    a[0].append(bar)
                slots = []
                for g in range(1, 13):
                    slots += [g, g] if g % 2 == 1 else [g]
                for x, g in zip(vr, slots):
                    a[g].append(x)
                fixed.update(a)
                off = 16
            else:
                if do_bar:
                    e(bar)
                e(vr)
                off = 0
            if mpv:
                pw = raw('s_waitcnt lgkmcnt(0)', 'wait')
                if mqk:
                    fixed[15].append(pw)
                else:
                    k = min(len(vs), 40)
                    e(vs[:k])
                    vs = vs[k:]
                    e(pw)
                b = {off + g: [] for g in range(16)}
                for g, x in enumerate(kr):
                    b[off + g].append(x)
                rest = dm + ql
                first = 8 if len(rest) <= 8 else 0
                for i, x in enumerate(rest):
                    b[off + first + (i * (16 - first)) // max(len(rest), 16 - first)].append(x)
                fixed.update(b)
                extra = []
            else:
                extra = kr + dm + ql
            if n % 16 == 0 and n >= 16 and not o.no_valu:
                k = 6 if n < NT else len(vs)
                vs = vs[:k] + self.l_final(n // 16 - 1) + vs[k:]
            if extra:
                cut = len(vs) // 2
                self.weave(mqk, fixed, vs[:cut], f'n{n}')
                tail = vs[cut:]
                while extra or tail:
                    if extra:
                        e(extra.pop(0))
                    e(tail[:2])
                    tail = tail[2:]
            else:
                self.weave(mqk + mpv, fixed, vs, f'n{n}')
            if n % 16 == 0 and n >= 16:
                e(comment(f'---- epilogue head {n // 16 - 1}'))
                e(self.stamp())
                e(self.epilogue(n // 16 - 1))
        assert not qnext
        assert self.next == {'K': NT, 'V': NT}, self.next

    def slow_path(self):
        out = []
        e = out.append
        t = V_T
        m = ['v26', 'v27']
        l = ['v24', 'v25']
        al = ['v12', 'v13']
        mc = ['v10', 'v11']
        VG = 'v9'
        e(label('L_slow'))
        for qt in range(2):
            for s in range(8):
                e(bload('buffer_load_dwordx4', Qreg(0, qt, s), V_QO, SQ, f's{36 + qt}', s * 32))
        for r in range(128):
            e(valu('v_mov_b32', f'v{O_BASE + r}', 0))
        for qt in range(2):
            e(valu('v_mov_b32', m[qt], '0xff800000'))
            e(valu('v_mov_b32', l[qt], 0))
        e(valu('v_lshrrev_b32', t[0], 5, 'v0'))
        e(valu('v_lshlrev_b32', VG, 10, t[0]))
        e(valu('v_bfe_u32', t[0], 'v0', 4, 1))
        e(valu('v_lshl_add_u32', VG, t[0], 5, VG))
        e(valu('v_bfe_u32', t[0], 'v0', 2, 1))
        e(valu('v_lshl_add_u32', VG, t[0], 4, VG))
        e(valu('v_bfe_u32', t[0], 'v0', 3, 1))
        e(valu('v_lshl_add_u32', VG, t[0], 3, VG))
        e(valu('v_and_b32', t[0], 3, 'v0'))
        e(valu('v_lshl_add_u32', VG, t[0], 1, VG))
        e(salu('s_mov_b32', 's39', 0))
        e(label('L_slow_tile'))
        for s in range(8):
            e(bload('buffer_load_dwordx4', Kf(0, s), V_QO, SK, 's38', s * 32))
        VS = 96
        e(salu('s_add_u32', 's40', 's38', 4096))
        for dt in range(4):
            for tt in range(2):
                for u in range(2):
                    for r in range(4):
                        reg = f'v{VS + (dt * 2 + tt) * 4 + 2 * u + r // 2}'
                        op = 'buffer_load_short_d16_hi' if r & 1 else 'buffer_load_short_d16'
                        e(bload(op, reg, VG, SV, 's40' if tt else 's38', (8 * u + r) * 256 + dt * 64))
                if (dt * 2 + tt) % 4 == 3:
                    e(raw('s_waitcnt vmcnt(0)', 'wait'))
        for x in self.qk(0):
            e(x)
        e(nop(15))
        c = [t[2], t[3]]
        mt = [t[0], t[1]]
        for qt in range(2):
            e(valu('v_max3_f32', mt[qt], m[qt], Sreg(0, qt, 0), Sreg(0, qt, 1)))
            for k in range(1, 8):
                e(valu('v_max3_f32', mt[qt], mt[qt], Sreg(0, qt, 2 * k), Sreg(0, qt, 2 * k + 1)))
            e(valu('v_mov_b32', c[qt], mt[qt]))
            e(nop(1))
            e(valu('v_permlane32_swap_b32', c[qt], mt[qt]))
            e(valu('v_max_f32', mt[qt], mt[qt], c[qt]))
            e(valu('v_sub_f32', al[qt], m[qt], mt[qt]))
            e(valu('v_mul_f32', al[qt], S_C, al[qt]))
            e(valu('v_exp_f32', al[qt], al[qt]))
            e(valu('v_mov_b32', m[qt], mt[qt]))
            e(valu('v_mul_f32', l[qt], l[qt], al[qt]))
            for r in range(16):
                x = Sreg(0, qt, r)
                e(valu('v_sub_f32', x, x, m[qt]))
                e(valu('v_mul_f32', x, S_C, x))
                e(valu('v_exp_f32', x, x))
                e(nop(0))
                e(valu('v_add_f32', l[qt], l[qt], x))
            for r in range(1, 16, 2):
                e(valu('v_cvt_pk_bf16_f32', Preg(0, qt, r // 8, (r % 8) // 2), Sreg(0, qt, r - 1), Sreg(0, qt, r)))
            for dt in range(4):
                for r in range(16):
                    x = Oreg(qt, dt, r, 1)
                    e(valu('v_mul_f32', x, x, al[qt]))
        e(nop(1))
        for dt in range(4):
            for tt in range(2):
                for qt in range(2):
                    e(mfma32(Oreg(qt, dt), R('v', VS + (dt * 2 + tt) * 4, 4), Preg(0, qt, tt, 0, 4), Oreg(qt, dt)))
        e(nop(15))
        e(salu('s_add_u32', 's38', 's38', TILE_BYTES))
        e(salu('s_add_u32', 's39', 's39', 1))
        e(salu('s_cmp_lt_u32', 's39', 16))
        e(raw('s_cbranch_scc1 L_slow_tile'))
        for qt in range(2):
            e(valu('v_mov_b32', c[qt], l[qt]))
            e(nop(1))
            e(valu('v_permlane32_swap_b32', c[qt], l[qt]))
            e(valu('v_add_f32', l[qt], l[qt], c[qt]))
            e(valu('v_rcp_f32', f'v{V_RL[qt]}', l[qt]))
        e(nop(1))
        saved = S_ROW[0]
        S_ROW[0] = ['s36', 's37']
        out += self.epilogue(0)
        S_ROW[0] = saved
        e(raw('s_waitcnt vmcnt(0)', 'wait'))
        e(raw('s_branch L_slow_next'))
        return out

    def tail(self):
        e = self.emit
        o = self.o
        if o.stamps:
            e(raw('s_waitcnt vmcnt(0)', 'wait'))
            e(self.stamp())
            e(raw('s_memrealtime s[96:97]', 'smem', ['s[96:97]']))
            e(raw('s_getreg_b32 s42, hwreg(HW_REG_XCC_ID)', 'salu', ['s42']))
            e(raw('s_waitcnt lgkmcnt(0)', 'wait'))
            e(salu('s_lshl_b32', 's40', 's2', 2), salu('s_add_u32', 's40', 's40', S_W), salu('s_lshl_b32', 's40', 's40', 7))
            e(salu('s_mov_b32', 's44', 's100'), salu('s_and_b32', 's45', 's101', '0xffff'),
              salu('s_mov_b32', 's46', 1 << 20), salu('s_mov_b32', 's47', '0x20000'))
            vals = ['s98'] + [f's{S_STAMP + 2 * k}' for k in range(self.nstamp)] + ['s94', 's96', 's42']
            e(valu('v_mov_b32', 'v30', 0))
            for k, s in enumerate(vals):
                e(valu('v_mov_b32', 'v31', s))
                e(bstore('buffer_store_dword', 'v31', 'v30', 's[44:47]', 's40', 4 * k))
                e(nop(1))
        e(salu('s_or_b64', 's[40:41]', S_FLAG[0], S_FLAG[1]))
        e(raw('s_cbranch_scc0 L_end'))
        e(raw('s_waitcnt vmcnt(0)', 'wait'))
        e(label('L_slow_next'))
        e(salu('s_cmp_lg_u64', S_FLAG[0], 0))
        e(raw('s_cbranch_scc0 L_slow_b'))
        e(salu('s_mov_b64', S_FLAG[0], 0), salu('s_mov_b32', 's36', 's24'), salu('s_mov_b32', 's37', 's25'),
          salu('s_mov_b32', 's38', 's3'))
        e(raw('s_branch L_slow'))
        e(label('L_slow_b'))
        e(salu('s_cmp_lg_u64', S_FLAG[1], 0))
        e(raw('s_cbranch_scc0 L_end'))
        e(salu('s_mov_b64', S_FLAG[1], 0), salu('s_mov_b32', 's36', 's26'), salu('s_mov_b32', 's37', 's27'),
          salu('s_add_u32', 's38', 's3', HEAD_BYTES))
        self.ins += self.slow_path()
        e(label('L_end'))
        e(raw('s_endpgm'))

    def build(self):
        self.prologue()
        self.body()
        self.tail()
        n0 = sum(1 for x in self.ins if x.kind == 'nop')
        self.ins = fix_hazards(self.ins)
        n1 = sum(1 for x in self.ins if x.kind == 'nop')
        assert check_hazards(self.ins) == 0
        print(f'instructions {len(self.ins)}, nops inserted {n1 - n0}, overflow {self.overflow}', file=sys.stderr)
        lds = 2 * self.R * TILE_BYTES
        txt = HEADER
        txt += '; Generated by a scheduling script: persistent flash attention, one wave per SIMD.\n'
        txt += f'; @launch grid=(256,1,1) block=(256,1,1) lds={lds}\n'
        txt += '.amdgcn_target "amdgcn-amd-amdhsa--gfx950"\n.text\n'
        txt += f'.globl {NAME}_kernel\n.p2align 8\n.type {NAME}_kernel,@function\n{NAME}_kernel:\n'
        for x in self.ins:
            txt += ('' if x.kind == 'label' else '    ') + x.text + '\n'
        txt += '.fill 64, 4, 0xbf800000\n'
        txt += f'''.section .rodata,"a"
.p2align 6
.amdhsa_kernel {NAME}_kernel
  .amdhsa_next_free_vgpr 512
  .amdhsa_next_free_sgpr 102
  .amdhsa_accum_offset 256
  .amdhsa_group_segment_fixed_size 0
  .amdhsa_kernarg_size 48
  .amdhsa_user_sgpr_count 2
  .amdhsa_user_sgpr_kernarg_segment_ptr 1
  .amdhsa_system_sgpr_workgroup_id_x 1
  .amdhsa_float_denorm_mode_32 3
  .amdhsa_float_denorm_mode_16_64 3
.end_amdhsa_kernel
'''
        return txt


def main():
    p = argparse.ArgumentParser()
    p.add_argument('-o', default='k.s')
    p.add_argument('--ring', type=int, default=10)
    p.add_argument('--prefill', type=int, default=6)
    p.add_argument('--catchup', type=int, default=2)
    p.add_argument('--qstart', type=int, default=5)
    p.add_argument('--stamps', action='store_true')
    p.add_argument('--no-valu', action='store_true')
    p.add_argument('--no-ds', action='store_true')
    p.add_argument('--no-dma', action='store_true')
    p.add_argument('--no-barrier', action='store_true')
    p.add_argument('--e64', default='')
    p.add_argument('--dma-flags', default='')
    p.add_argument('--q-flags', default='')
    p.add_argument('--st-flags', default='')
    o = p.parse_args()
    open(o.o, 'w').write(Gen(o).build())


if __name__ == '__main__':
    main()
```

```python
import argparse
import math
import struct
import sys

from asmlib import *

NAME = 'standalone__mha_softmax__near_ridge'
HEADER = open('standalone__mha_softmax__near_ridge.s.ref').read().split('; Override')[0]

TENSOR_BYTES = 8 * 32 * 512 * 128 * 2
HEAD_BYTES = 512 * 256
TILE_BYTES = 32 * 256
NT = 32


def f32bits(x):
    return struct.unpack('<I', struct.pack('<f', x))[0]


C_SCALE = math.log2(math.e) / math.sqrt(128.0)
L_LIMIT = 2.0 ** 40

SQ, SK, SV, SO = 's[4:7]', 's[8:11]', 's[12:15]', 's[16:19]'
S_C, S_W, S_WB, S_T = 's20', 's21', 's22', 's23'
S_ROW = [['s24', 's25'], ['s26', 's27']]
S_FLAG = ['s[28:29]', 's[30:31]']
S_TILE = 32
S_STAMP = 64

V_QO, V_DK, V_DV = 'v1', 'v2', 'v3'
V_AK = [['v4', 'v5'], ['v6', 'v7']]
V_AV = ['v8', 'v9']
V_L = [['v10', 'v11'], ['v24', 'v25']]
V_MC = [['v12', 'v13'], ['v26', 'v27']]
V_RL = [14, 16]
V_T = ['v18', 'v19', 'v20', 'v21', 'v22', 'v23']
P_BASE, S_BASE, O_BASE = 32, 64, 128
Q_BASE = [0, 64]
KF_BASE = [128, 192]
VF_BASE = 160


def Sreg(n, qt, r=0, cnt=1):
    return R('v', S_BASE + (n & 1) * 32 + qt * 16 + r, cnt)


def Preg(n, qt, t, m=0, cnt=1):
    return R('v', P_BASE + (n & 1) * 16 + qt * 8 + t * 4 + m, cnt)


def Oreg(qt, dt, r=0, cnt=16):
    return R('v', O_BASE + (qt * 4 + dt) * 16 + r, cnt)


def Qreg(head, qt, s):
    return R('a', Q_BASE[head] + (qt * 8 + s) * 4, 4)


def Kf(n, s):
    return R('a', KF_BASE[n & 1] + s * 4, 4)


def Vf(t, dt, u=None):
    b = VF_BASE + (dt * 2 + t) * 4
    return R('a', b, 4) if u is None else R('a', b + 2 * u, 2)


class Gen:
    def __init__(self, o):
        self.o = o
        self.ins = []
        self.vm = []
        self.R = o.ring
        self.half = self.R // 2 * TILE_BYTES
        self.vbase = self.R * TILE_BYTES
        self.landed = set()
        self.slot = {}
        self.reads_open = set()
        self.done_reading = set()
        self.next = {'K': 0, 'V': 0}
        self.nstamp = 0
        self.overflow = []

    def emit(self, *xs):
        for x in xs:
            if isinstance(x, (list, tuple)):
                self.emit(*x)
                continue
            if x.kind in ('vmem', 'dma', 'store'):
                self.vm.append(x.tag)
            if x.kind == 'ds' and x.tag is not None:
                assert x.tag in self.landed, f'read of {x.tag} before it is visible'
                self.reads_open.add(x.tag)
            self.ins.append(x)

    def vm_needed(self, tags):
        last = -1
        for i, t in enumerate(self.vm):
            if t in tags:
                last = i
        for t in tags:
            assert t in self.vm, f'{t} never issued'
        return min(63, len(self.vm) - 1 - last)

    def wait(self, tags=(), lgkm=None):
        parts = []
        if tags:
            parts.append(f'vmcnt({self.vm_needed(tags)})')
        if lgkm is not None:
            parts.append(f'lgkmcnt({lgkm})')
        return raw('s_waitcnt ' + ' '.join(parts), 'wait')

    def barrier_mark(self, tiles, lgkm_clean):
        self.landed |= set(tiles)
        if lgkm_clean:
            self.done_reading |= self.reads_open
            self.reads_open = set()

    def stamp(self):
        if self.o.padfrom is not None:
            self.nstamp += 1
            if self.nstamp == self.o.padfrom:
                return [raw('s_memrealtime s[94:95]', 'smem', ['s[94:95]'])]
            return []
        if not self.o.stamps:
            return []
        assert self.nstamp < 15
        r = R('s', S_STAMP + 2 * self.nstamp, 2)
        self.nstamp += 1
        return [raw(f's_memtime {r}', 'smem', [r])]

    def can_dma(self, kind):
        n = self.next[kind]
        if n >= NT:
            return False
        held = self.slot.get((kind, n % self.R))
        return held is None or (kind, held) in self.done_reading

    def dma_tile(self, kind):
        n = self.next[kind]
        assert self.can_dma(kind)
        self.next[kind] = n + 1
        self.slot[(kind, n % self.R)] = n
        base = (n % self.R) * TILE_BYTES + (self.vbase if kind == 'V' else 0)
        voff, srd = (V_DK, SK) if kind == 'K' else (V_DV, SV)
        so = f's{S_TILE + n}'
        fl = self.o.dma_flags
        return [salu('s_add_u32', 'm0', S_WB, base),
                dma(voff, srd, so, 0, fl, tag=(kind, n)),
                dma(voff, srd, so, 1024, fl, tag=(kind, n))]

    def k_reads(self, n):
        slot = n % self.R
        hi = 1 if slot * TILE_BYTES >= self.half else 0
        base = slot * TILE_BYTES - hi * self.half
        return [ds_read('ds_read_b128', Kf(n, s), V_AK[hi][s & 1], base + (s >> 1) * 256, tag=('K', n))
                for s in range(8)]

    def v_reads(self, n):
        slot = n % self.R
        hi = 1 if slot * TILE_BYTES >= self.half else 0
        base = slot * TILE_BYTES - hi * self.half
        out = []
        for dt in range(4):
            for t in range(2):
                for u in range(2):
                    out.append(ds_read('ds_read_b64_tr_b16', Vf(t, dt, u), V_AV[hi],
                                       base + (4 * t + 2 * u) * 1024 + dt * 256, tag=('V', n)))
        return out

    def q_load(self, head, qt, s):
        return bload('buffer_load_dwordx4', Qreg(head, qt, s), V_QO, SQ, S_ROW[head][qt], s * 32,
                     self.o.q_flags, tag=('Q', head, qt))

    def qk(self, n):
        h = n // 16
        return [mfma32(Sreg(n, qt, 0, 16), Kf(n, s), Qreg(h, qt, s), Sreg(n, qt, 0, 16) if s else '0')
                for qt in range(2) for s in range(8)]

    def pv(self, n):
        first = n % 16 == 0
        return [mfma32(Oreg(qt, dt), Vf(t, dt), Preg(n, qt, t, 0, 4), '0' if (first and t == 0) else Oreg(qt, dt))
                for dt in range(4) for t in range(2) for qt in range(2)]

    def op_fma(self, n, e):
        qt, r = divmod(e, 16)
        x = Sreg(n, qt, r)
        return valu('v_fma_f32', x, x, S_C, V_MC[n // 16][qt])

    def op_exp(self, n, e):
        qt, r = divmod(e, 16)
        x = Sreg(n, qt, r)
        return valu('v_exp_f32' + self.o.e64, x, x)

    def op_add(self, n, e):
        qt, r = divmod(e, 16)
        x = Sreg(n, qt, r)
        l = V_L[n // 16][qt]
        if n % 16 == 0 and r == 0:
            return valu('v_mov_b32' + self.o.e64, l, x)
        return valu('v_add_f32' + self.o.e64, l, l, x)

    def op_cvt(self, n, e):
        qt, r = divmod(e, 16)
        t, i = divmod(r, 8)
        return valu('v_cvt_pk_bf16_f32', Preg(n, qt, t, i // 2), Sreg(n, qt, r - 1), Sreg(n, qt, r))

    def max_chain(self, n):
        h = n // 16
        out = []
        m = [V_T[0], V_T[1]]
        c = [V_T[2], V_T[3]]
        for k in range(8):
            for qt in range(2):
                if k == 0:
                    out.append(valu('v_max3_f32', m[qt], Sreg(n, qt, 0), Sreg(n, qt, 1), Sreg(n, qt, 2)))
                elif k < 7:
                    out.append(valu('v_max3_f32', m[qt], m[qt], Sreg(n, qt, 2 * k + 1), Sreg(n, qt, 2 * k + 2)))
                else:
                    out.append(valu('v_max_f32', m[qt], m[qt], Sreg(n, qt, 15)))
        out += [valu('v_mov_b32', c[0], m[0]), valu('v_mov_b32', c[1], m[1]), nop(0),
                valu('v_permlane32_swap_b32', c[0], m[0]), valu('v_permlane32_swap_b32', c[1], m[1]),
                valu('v_max_f32', m[0], m[0], c[0]), valu('v_max_f32', m[1], m[1], c[1]),
                valu('v_mul_f32', V_MC[h][0], S_C, m[0], mods=''), valu('v_mul_f32', V_MC[h][1], S_C, m[1]),
                valu('v_sub_f32', V_MC[h][0], '0', V_MC[h][0]), valu('v_sub_f32', V_MC[h][1], '0', V_MC[h][1])]
        return out

    def sm_stream(self, n):
        out = []

        def rnd(g):
            r = []
            if 0 <= g < 32 and n < NT:
                r.append(self.op_fma(n, g))
            for lag, f in ((1, self.op_exp), (2, self.op_add)):
                e, m = g - lag, n
                if e < 0:
                    e, m = e + 32, n - 1
                if 0 <= m < NT and (m < n or n < NT):
                    r.append(f(m, e))
                    if lag == 2 and e % 2 == 1:
                        r.append(self.op_cvt(m, e))
            return r

        if n < NT and n % 16 == 0:
            for g in (0, 1):
                out += [x for x in rnd(g) if not self.is_of_tile(x, n)]
            out += self.max_chain(n)
            for g in range(32):
                out += [x for x in rnd(g) if self.is_of_tile(x, n)]
        else:
            for g in range(32 if n < NT else 2):
                out += rnd(g)
        if self.o.no_valu:
            out = []
        return out

    def is_of_tile(self, x, n):
        mine = regs(Sreg(n, 0, 0, 32))
        return bool(x.rd & mine)

    def l_final(self, h):
        l = V_L[h]
        c = [V_T[2], V_T[3]]
        out = [valu('v_mov_b32', c[0], l[0]), valu('v_mov_b32', c[1], l[1]), nop(0),
               valu('v_permlane32_swap_b32', c[0], l[0]), valu('v_permlane32_swap_b32', c[1], l[1]),
               valu('v_add_f32', l[0], l[0], c[0]), valu('v_add_f32', l[1], l[1], c[1]),
               valu('v_rcp_f32', f'v{V_RL[0]}', l[0]), valu('v_rcp_f32', f'v{V_RL[1]}', l[1]),
               valu('v_add_f32', c[1], l[0], l[1]),
               valu('v_mov_b32', V_T[4], hex(f32bits(L_LIMIT))),
               valu('v_cmp_nlt_f32', 'vcc', c[1], V_T[4]),
               nop(1),
               salu('s_mov_b64', S_FLAG[h], 'vcc')]
        return out

    def epilogue(self, h):
        out = []
        for dt in range(4):
            for qt in range(2):
                b = O_BASE + (qt * 4 + dt) * 16
                rl = R('v', V_RL[qt], 2)
                for half in range(2):
                    for k in range(4):
                        r = b + half * 8 + 2 * k
                        x = I(f'v_pk_mul_f32 {R("v", r, 2)}, {R("v", r, 2)}, {rl} op_sel_hi:[1,0]', 'valu',
                              [R('v', r, 2)], [R('v', r, 2), f'v{V_RL[qt]}'])
                        out.append(x)
                    for k in range(4):
                        r = b + half * 8 + 2 * k
                        out.append(valu('v_cvt_pk_bf16_f32', f'v{b + half * 8 + k}', f'v{r}', f'v{r + 1}'))
                    out.append(bstore('buffer_store_dwordx4', R('v', b + half * 8, 4), V_QO, SO, S_ROW[h][qt],
                                      dt * 64 + half * 32, self.o.st_flags, tag=('O', h)))
        return out

    def weave(self, mf, fixed, vs, name):
        G = len(mf)
        if G == 0:
            for g in sorted(fixed):
                self.emit(fixed[g])
            self.emit(vs)
            return
        oc = [sum(x.cost for x in fixed.get(g, [])) for g in range(G)]
        total = sum(oc) + sum(x.cost for x in vs)
        cap = 6
        while True:
            place = self.pack(G, oc, vs, total, cap)
            if place is not None:
                break
            cap += 1
        if cap > 6:
            self.overflow.append((name, cap, total, G))
        for g in range(G):
            self.emit(mf[g])
            fx = list(fixed.get(g, []))
            pv = list(place[g])
            seq = []
            while fx or pv:
                if fx:
                    seq.append(fx.pop(0))
                if pv:
                    seq.append(pv.pop(0))
            self.emit(seq)

    @staticmethod
    def pack(G, oc, vs, total, cap):
        for eager in (False, True):
            place = [[] for _ in range(G)]
            i = 0
            cum = 0
            for g in range(G):
                c = oc[g]
                cum += oc[g]
                tgt = total * (g + 1) / G
                while i < len(vs) and c + vs[i].cost <= cap and (eager or cum + vs[i].cost <= tgt + 0.99):
                    place[g].append(vs[i])
                    c += vs[i].cost
                    cum += vs[i].cost
                    i += 1
            if i == len(vs):
                return place
        return None

    def prologue(self):
        o = self.o
        e = self.emit
        e(salu('s_cmp_ge_u32', 's2', 256), raw('s_cbranch_scc1 L_end'))
        e(raw('s_load_dwordx8 s[64:71], s[0:1], 0', 'smem', ['s[64:71]']))
        if o.stamps:
            e(raw('s_load_dwordx2 s[100:101], s[0:1], 40', 'smem', ['s[100:101]']))
            e(raw('s_memtime s[98:99]', 'smem', ['s[98:99]']))
            e(raw('s_memrealtime s[94:95]', 'smem', ['s[94:95]']))
        if o.padfrom == 0:
            e(raw('s_memrealtime s[94:95]', 'smem', ['s[94:95]']))
        t = V_T
        e(valu('v_lshrrev_b32', t[0], 6, 'v0'),
          valu('v_and_b32', 'v0', 63, 'v0'),
          valu('v_readfirstlane_b32', S_W, t[0]))
        e(salu('s_and_b32', 's3', 's2', 7), salu('s_lshr_b32', S_T, 's2', 3),
          salu('s_lshl_b32', 's3', 's3', 4),
          salu('s_lshr_b32', 's24', S_T, 1), salu('s_add_u32', 's3', 's3', 's24'),
          salu('s_lshl_b32', 's3', 's3', 18),
          salu('s_and_b32', S_T, S_T, 1), salu('s_lshl_b32', S_T, S_T, 16),
          salu('s_lshl_b32', 's24', S_W, 14), salu('s_add_u32', 's24', 's24', S_T),
          salu('s_add_u32', 's24', 's24', 's3'),
          salu('s_add_u32', 's25', 's24', 8192),
          salu('s_add_u32', 's26', 's24', HEAD_BYTES), salu('s_add_u32', 's27', 's25', HEAD_BYTES),
          salu('s_lshl_b32', S_WB, S_W, 11),
          salu('s_mov_b32', S_C, hex(f32bits(C_SCALE))))
        e(valu('v_and_b32', t[0], 31, 'v0'), valu('v_lshrrev_b32', t[1], 5, 'v0'),
          valu('v_lshlrev_b32', V_QO, 8, t[0]), valu('v_lshl_add_u32', V_QO, t[1], 4, V_QO))
        e(valu('v_lshrrev_b32', t[2], 4, 'v0'), valu('v_bfe_u32', t[3], 'v0', 2, 2), valu('v_and_b32', t[4], 3, 'v0'),
          valu('v_lshlrev_b32', V_DV, 6, t[2]), valu('v_lshl_add_u32', V_DV, t[3], 8, V_DV),
          valu('v_add_u32', V_DV, S_WB, V_DV),
          valu('v_xor_b32', t[5], S_W, t[4]),
          valu('v_lshl_add_u32', V_DK, t[5], 4, V_DV), valu('v_lshl_add_u32', V_DV, t[4], 4, V_DV))
        e(raw('s_waitcnt lgkmcnt(0)', 'wait'))
        for srd, src in ((4, 64), (8, 66), (12, 68), (16, 70)):
            e(salu('s_mov_b32', f's{srd}', f's{src}'), salu('s_and_b32', f's{srd + 1}', f's{src + 1}', '0xffff'),
              salu('s_mov_b32', f's{srd + 2}', TENSOR_BYTES), salu('s_mov_b32', f's{srd + 3}', '0x20000'))
        for n in range(NT):
            if n < 4:
                e(salu('s_add_u32', f's{S_TILE + n}', 's3', n * TILE_BYTES))
        e(self.spaced(self.dma_tile('K')))
        for qt in range(2):
            for s in range(8):
                e(self.q_load(0, qt, s))
        e(self.spaced(self.dma_tile('K')))
        for n in range(4, NT):
            e(salu('s_add_u32', f's{S_TILE + n}', 's3', n * TILE_BYTES))
        order = ['K', 'V'] * 16
        for k in order[:o.prefill]:
            if self.can_dma(k):
                e(self.spaced(self.dma_tile(k)))
        e(valu('v_lshrrev_b32', t[2], 2, t[0]), valu('v_lshlrev_b32', t[2], 10, t[2]),
          valu('v_and_b32', t[3], 3, t[0]), valu('v_lshl_add_u32', t[2], t[3], 6, t[2]),
          valu('v_lshrrev_b32', t[3], 3, t[0]), valu('v_xor_b32', t[3], t[3], t[1]),
          valu('v_lshl_add_u32', V_AK[0][0], t[3], 4, t[2]),
          valu('v_xor_b32', V_AK[0][1], 32, V_AK[0][0]),
          valu('v_add_u32', V_AK[1][0], self.half, V_AK[0][0]), valu('v_add_u32', V_AK[1][1], self.half, V_AK[0][1]))
        e(valu('v_lshlrev_b32', t[2], 10, t[1]),
          valu('v_bfe_u32', t[3], 'v0', 2, 2), valu('v_lshl_add_u32', t[2], t[3], 6, t[2]),
          valu('v_bfe_u32', t[3], 'v0', 4, 1), valu('v_lshl_add_u32', t[2], t[3], 5, t[2]),
          valu('v_and_b32', t[3], 1, 'v0'), valu('v_lshl_add_u32', t[2], t[3], 4, t[2]),
          valu('v_bfe_u32', t[3], 'v0', 1, 1), valu('v_lshl_add_u32', t[2], t[3], 3, t[2]),
          valu('v_add_u32', V_AV[0], self.vbase, t[2]), valu('v_add_u32', V_AV[1], self.vbase + self.half, t[2]))

    @staticmethod
    def spaced(d):
        return [d[0], nop(0), d[1], d[2]]

    def body(self):
        o = self.o
        e = self.emit
        bar = raw('s_barrier', 'barrier') if not o.no_barrier else nop(0)
        e(self.wait([('K', 0)]), bar)
        self.barrier_mark([('K', 0)], True)
        e(self.stamp())
        e(self.k_reads(0))
        e(self.wait([('Q', 0, 0)], 0))
        mf = self.qk(0)
        e(mf[:8])
        e(self.wait([('Q', 0, 1), ('K', 1)]), bar)
        self.barrier_mark([('K', 1)], True)
        kr = self.k_reads(1)
        for g in range(8):
            e(mf[8 + g], kr[g])
        qnext = [(qt, s) for qt in range(2) for s in range(8)]
        for n in range(NT + 1):
            e(comment(f'---- sub-iteration {n}'))
            mqk = self.qk(n + 1) if n + 1 < NT else []
            mpv = self.pv(n - 1) if n >= 1 else []
            vs = self.sm_stream(n)
            fixed = {}
            tags = []
            do_bar = n == 0 or (n % 2 == 1 and n < NT)
            if do_bar:
                want = [('K', 2)] if n == 0 else [('V', n - 1), ('K', n + 2), ('V', n), ('K', n + 3)]
                tags = [x for x in want if x[1] < NT]
            if n + 1 == 16:
                tags = tags + [('Q', 1, 0), ('Q', 1, 1)]
            e(self.stamp() if n in (1, 3, 5, 9, 13, 15, 17, 19, 23, 27, 31) else [])
            e(self.wait(tags, 0))
            if do_bar:
                self.barrier_mark([x for x in tags if x[0] != 'Q'], True)
            vr = self.v_reads(n - 1) if n >= 1 else []
            kr = self.k_reads(n + 2) if n + 2 < NT else []
            if o.no_ds:
                vr, kr = [], []
            dm = []
            budget = o.catchup if n < 8 else 1
            for _ in range(budget):
                for k in ('K', 'V'):
                    if self.can_dma(k):
                        dm += self.dma_tile(k)
            if o.no_dma:
                for x in dm:
                    if x.kind == 'dma':
                        self.vm.append(x.tag)
                dm = []
            ql = []
            if 1 <= n <= 14 and qnext and n >= o.qstart:
                for _ in range(2):
                    if qnext:
                        ql.append(self.q_load(1, *qnext.pop(0)))
            if mqk:
                a = {g: [] for g in range(16)}
                if do_bar:
                    a[0].append(bar)
                slots = []
                for g in range(1, 13):
                    slots += [g, g] if g % 2 == 1 else [g]
                for x, g in zip(vr, slots):
                    a[g].append(x)
                fixed.update(a)
                off = 16
            else:
                if do_bar:
                    e(bar)
                e(vr)
                off = 0
            if mpv:
                pw = raw('s_waitcnt lgkmcnt(0)', 'wait')
                if mqk:
                    fixed[15].append(pw)
                else:
                    k = min(len(vs), 40)
                    e(vs[:k])
                    vs = vs[k:]
                    e(pw)
                b = {off + g: [] for g in range(16)}
                for g, x in enumerate(kr):
                    b[off + g].append(x)
                rest = dm + ql
                first = 8 if len(rest) <= 8 else 0
                for i, x in enumerate(rest):
                    b[off + first + (i * (16 - first)) // max(len(rest), 16 - first)].append(x)
                fixed.update(b)
                extra = []
            else:
                extra = kr + dm + ql
            if n % 16 == 0 and n >= 16 and not o.no_valu:
                k = 6 if n < NT else len(vs)
                vs = vs[:k] + self.l_final(n // 16 - 1) + vs[k:]
            if extra:
                cut = len(vs) // 2
                self.weave(mqk, fixed, vs[:cut], f'n{n}')
                tail = vs[cut:]
                while extra or tail:
                    if extra:
                        e(extra.pop(0))
                    e(tail[:2])
                    tail = tail[2:]
            else:
                self.weave(mqk + mpv, fixed, vs, f'n{n}')
            if n % 16 == 0 and n >= 16:
                e(comment(f'---- epilogue head {n // 16 - 1}'))
                e(self.stamp())
                e(self.epilogue(n // 16 - 1))
        assert not qnext
        assert self.next == {'K': NT, 'V': NT}, self.next

    def slow_path(self):
        out = []
        e = out.append
        t = V_T
        m = ['v26', 'v27']
        l = ['v24', 'v25']
        al = ['v12', 'v13']
        mc = ['v10', 'v11']
        VG = 'v9'
        e(label('L_slow'))
        for qt in range(2):
            for s in range(8):
                e(bload('buffer_load_dwordx4', Qreg(0, qt, s), V_QO, SQ, f's{36 + qt}', s * 32))
        for r in range(128):
            e(valu('v_mov_b32', f'v{O_BASE + r}', 0))
        for qt in range(2):
            e(valu('v_mov_b32', m[qt], '0xff800000'))
            e(valu('v_mov_b32', l[qt], 0))
        e(valu('v_lshrrev_b32', t[0], 5, 'v0'))
        e(valu('v_lshlrev_b32', VG, 10, t[0]))
        e(valu('v_bfe_u32', t[0], 'v0', 4, 1))
        e(valu('v_lshl_add_u32', VG, t[0], 5, VG))
        e(valu('v_bfe_u32', t[0], 'v0', 2, 1))
        e(valu('v_lshl_add_u32', VG, t[0], 4, VG))
        e(valu('v_bfe_u32', t[0], 'v0', 3, 1))
        e(valu('v_lshl_add_u32', VG, t[0], 3, VG))
        e(valu('v_and_b32', t[0], 3, 'v0'))
        e(valu('v_lshl_add_u32', VG, t[0], 1, VG))
        e(salu('s_mov_b32', 's39', 0))
        e(label('L_slow_tile'))
        for s in range(8):
            e(bload('buffer_load_dwordx4', Kf(0, s), V_QO, SK, 's38', s * 32))
        VS = 96
        e(salu('s_add_u32', 's40', 's38', 4096))
        for dt in range(4):
            for tt in range(2):
                for u in range(2):
                    for r in range(4):
                        reg = f'v{VS + (dt * 2 + tt) * 4 + 2 * u + r // 2}'
                        op = 'buffer_load_short_d16_hi' if r & 1 else 'buffer_load_short_d16'
                        e(bload(op, reg, VG, SV, 's40' if tt else 's38', (8 * u + r) * 256 + dt * 64))
                if (dt * 2 + tt) % 4 == 3:
                    e(raw('s_waitcnt vmcnt(0)', 'wait'))
        for x in self.qk(0):
            e(x)
        e(nop(15))
        c = [t[2], t[3]]
        mt = [t[0], t[1]]
        for qt in range(2):
            e(valu('v_max3_f32', mt[qt], m[qt], Sreg(0, qt, 0), Sreg(0, qt, 1)))
            for k in range(1, 8):
                e(valu('v_max3_f32', mt[qt], mt[qt], Sreg(0, qt, 2 * k), Sreg(0, qt, 2 * k + 1)))
            e(valu('v_mov_b32', c[qt], mt[qt]))
            e(nop(1))
            e(valu('v_permlane32_swap_b32', c[qt], mt[qt]))
            e(valu('v_max_f32', mt[qt], mt[qt], c[qt]))
            e(valu('v_sub_f32', al[qt], m[qt], mt[qt]))
            e(valu('v_mul_f32', al[qt], S_C, al[qt]))
            e(valu('v_exp_f32', al[qt], al[qt]))
            e(valu('v_mov_b32', m[qt], mt[qt]))
            e(valu('v_mul_f32', l[qt], l[qt], al[qt]))
            for r in range(16):
                x = Sreg(0, qt, r)
                e(valu('v_sub_f32', x, x, m[qt]))
                e(valu('v_mul_f32', x, S_C, x))
                e(valu('v_exp_f32', x, x))
                e(nop(0))
                e(valu('v_add_f32', l[qt], l[qt], x))
            for r in range(1, 16, 2):
                e(valu('v_cvt_pk_bf16_f32', Preg(0, qt, r // 8, (r % 8) // 2), Sreg(0, qt, r - 1), Sreg(0, qt, r)))
            for dt in range(4):
                for r in range(16):
                    x = Oreg(qt, dt, r, 1)
                    e(valu('v_mul_f32', x, x, al[qt]))
        e(nop(1))
        for dt in range(4):
            for tt in range(2):
                for qt in range(2):
                    e(mfma32(Oreg(qt, dt), R('v', VS + (dt * 2 + tt) * 4, 4), Preg(0, qt, tt, 0, 4), Oreg(qt, dt)))
        e(nop(15))
        e(salu('s_add_u32', 's38', 's38', TILE_BYTES))
        e(salu('s_add_u32', 's39', 's39', 1))
        e(salu('s_cmp_lt_u32', 's39', 16))
        e(raw('s_cbranch_scc1 L_slow_tile'))
        for qt in range(2):
            e(valu('v_mov_b32', c[qt], l[qt]))
            e(nop(1))
            e(valu('v_permlane32_swap_b32', c[qt], l[qt]))
            e(valu('v_add_f32', l[qt], l[qt], c[qt]))
            e(valu('v_rcp_f32', f'v{V_RL[qt]}', l[qt]))
        e(nop(1))
        saved = S_ROW[0]
        S_ROW[0] = ['s36', 's37']
        out += self.epilogue(0)
        S_ROW[0] = saved
        e(raw('s_waitcnt vmcnt(0)', 'wait'))
        e(raw('s_branch L_slow_next'))
        return out

    def tail(self):
        e = self.emit
        o = self.o
        if o.padfrom is not None:
            e(raw('s_waitcnt vmcnt(0)', 'wait'))
            e(self.stamp())
            e(raw('s_waitcnt lgkmcnt(0)', 'wait'))
            e(salu('s_add_u32', 's94', 's94', 8000))
            e(label('L_pad'))
            e(raw('s_memrealtime s[96:97]', 'smem', ['s[96:97]']))
            e(raw('s_waitcnt lgkmcnt(0)', 'wait'))
            e(salu('s_sub_u32', 's96', 's96', 's94'))
            e(salu('s_cmp_lt_i32', 's96', 0))
            e(raw('s_cbranch_scc1 L_pad'))
        if o.stamps:
            e(raw('s_waitcnt vmcnt(0)', 'wait'))
            e(self.stamp())
            e(raw('s_memrealtime s[96:97]', 'smem', ['s[96:97]']))
            e(raw('s_getreg_b32 s42, hwreg(HW_REG_XCC_ID)', 'salu', ['s42']))
            e(raw('s_waitcnt lgkmcnt(0)', 'wait'))
            e(salu('s_lshl_b32', 's40', 's2', 2), salu('s_add_u32', 's40', 's40', S_W), salu('s_lshl_b32', 's40', 's40', 7))
            e(salu('s_mov_b32', 's44', 's100'), salu('s_and_b32', 's45', 's101', '0xffff'),
              salu('s_mov_b32', 's46', 1 << 20), salu('s_mov_b32', 's47', '0x20000'))
            vals = ['s98'] + [f's{S_STAMP + 2 * k}' for k in range(self.nstamp)] + ['s94', 's96', 's42']
            e(valu('v_mov_b32', 'v30', 0))
            for k, s in enumerate(vals):
                e(valu('v_mov_b32', 'v31', s))
                e(bstore('buffer_store_dword', 'v31', 'v30', 's[44:47]', 's40', 4 * k))
                e(nop(1))
        e(salu('s_or_b64', 's[40:41]', S_FLAG[0], S_FLAG[1]))
        e(raw('s_cbranch_scc0 L_end'))
        e(raw('s_waitcnt vmcnt(0)', 'wait'))
        e(label('L_slow_next'))
        e(salu('s_cmp_lg_u64', S_FLAG[0], 0))
        e(raw('s_cbranch_scc0 L_slow_b'))
        e(salu('s_mov_b64', S_FLAG[0], 0), salu('s_mov_b32', 's36', 's24'), salu('s_mov_b32', 's37', 's25'),
          salu('s_mov_b32', 's38', 's3'))
        e(raw('s_branch L_slow'))
        e(label('L_slow_b'))
        e(salu('s_cmp_lg_u64', S_FLAG[1], 0))
        e(raw('s_cbranch_scc0 L_end'))
        e(salu('s_mov_b64', S_FLAG[1], 0), salu('s_mov_b32', 's36', 's26'), salu('s_mov_b32', 's37', 's27'),
          salu('s_add_u32', 's38', 's3', HEAD_BYTES))
        self.ins += self.slow_path()
        e(label('L_end'))
        e(raw('s_endpgm'))

    def build(self):
        self.prologue()
        self.body()
        self.tail()
        n0 = sum(1 for x in self.ins if x.kind == 'nop')
        self.ins = fix_hazards(self.ins)
        n1 = sum(1 for x in self.ins if x.kind == 'nop')
        assert check_hazards(self.ins) == 0
        print(f'instructions {len(self.ins)}, nops inserted {n1 - n0}, overflow {self.overflow}', file=sys.stderr)
        lds = 2 * self.R * TILE_BYTES
        txt = HEADER
        txt += '; Generated by a scheduling script: persistent flash attention, one wave per SIMD.\n'
        txt += f'; @launch grid=(256,1,1) block=(256,1,1) lds={lds}\n'
        txt += '.amdgcn_target "amdgcn-amd-amdhsa--gfx950"\n.text\n'
        txt += f'.globl {NAME}_kernel\n.p2align 8\n.type {NAME}_kernel,@function\n{NAME}_kernel:\n'
        for x in self.ins:
            txt += ('' if x.kind == 'label' else '    ') + x.text + '\n'
        txt += '.fill 64, 4, 0xbf800000\n'
        txt += f'''.section .rodata,"a"
.p2align 6
.amdhsa_kernel {NAME}_kernel
  .amdhsa_next_free_vgpr 512
  .amdhsa_next_free_sgpr 102
  .amdhsa_accum_offset 256
  .amdhsa_group_segment_fixed_size 0
  .amdhsa_kernarg_size 48
  .amdhsa_user_sgpr_count 2
  .amdhsa_user_sgpr_kernarg_segment_ptr 1
  .amdhsa_system_sgpr_workgroup_id_x 1
  .amdhsa_float_denorm_mode_32 3
  .amdhsa_float_denorm_mode_16_64 3
.end_amdhsa_kernel
'''
        return txt


def main():
    p = argparse.ArgumentParser()
    p.add_argument('-o', default='k.s')
    p.add_argument('--ring', type=int, default=10)
    p.add_argument('--prefill', type=int, default=6)
    p.add_argument('--catchup', type=int, default=2)
    p.add_argument('--qstart', type=int, default=5)
    p.add_argument('--stamps', action='store_true')
    p.add_argument('--padfrom', type=int, default=None)
    p.add_argument('--no-valu', action='store_true')
    p.add_argument('--no-ds', action='store_true')
    p.add_argument('--no-dma', action='store_true')
    p.add_argument('--no-barrier', action='store_true')
    p.add_argument('--e64', default='')
    p.add_argument('--dma-flags', default='')
    p.add_argument('--q-flags', default='')
    p.add_argument('--st-flags', default='')
    o = p.parse_args()
    open(o.o, 'w').write(Gen(o).build())


if __name__ == '__main__':
    main()
```

```python
import argparse
import math
import struct
import sys

from asmlib import *

NAME = 'standalone__mha_softmax__near_ridge'
HEADER = open('standalone__mha_softmax__near_ridge.s.ref').read().split('; Override')[0]

TENSOR_BYTES = 8 * 32 * 512 * 128 * 2
HEAD_BYTES = 512 * 256
TILE = 32 * 256
NT = 32
RING = 8
VBASE = RING * TILE
STAGE = 2 * RING * TILE
QOFF = VBASE + 4 * TILE


def f32bits(x):
    return struct.unpack('<I', struct.pack('<f', x))[0]


C_SCALE = math.log2(math.e) / math.sqrt(128.0)
L_LIMIT = 2.0 ** 40

SQ, SK, SV, SO = 's[4:7]', 's[8:11]', 's[12:15]', 's[16:19]'
S_C, S_W, S_WB, S_T = 's20', 's21', 's22', 's23'
S_ROW = ['s24', 's25']
S_WS = 's26'
S_T2 = 's27'
S_FLAG = ['s[28:29]', 's[30:31]']
S_TILE = 32
S_STAMP = 64

V_ST, V_DKV, V_DQ = 'v1', 'v2', ['v3', 'v4']
V_AK, V_AV, V_AQ = 'v5', ['v6', 'v7'], 'v8'
V_EW = 'v9'
V_ER = 'v10'
V_MC = ['v12', 'v13', 'v14', 'v15']
V_RL = 16
V_T = [f'v{i}' for i in range(20, 32)]
P_BASE, S_BASE, O_BASE = 32, 64, 128
Q_BASE = [0, 64]
KF_BASE = [128, 192]
VF_BASE = 160
L_BASE = 224
ONES = 'a[240:243]'


def Sblk(n, qt, kt):
    return R('v', S_BASE + (n & 1) * 32 + qt * 8 + kt * 4, 4)


def Sel(n, e):
    return R('v', S_BASE + (n & 1) * 32 + e)


def Pblk(n, qt):
    return R('v', P_BASE + (n & 1) * 16 + qt * 4, 4)


def Oblk(qt, dt):
    return R('v', O_BASE + (qt * 8 + dt) * 4, 4)


def Qf(h, qt, s):
    return R('a', Q_BASE[h] + (qt * 4 + s) * 4, 4)


def Kf(n, kt, s):
    return R('a', KF_BASE[n & 1] + (kt * 4 + s) * 4, 4)


def Vf(dt, u=None):
    b = VF_BASE + dt * 4
    return R('a', b, 4) if u is None else R('a', b + 2 * u, 2)


def Lblk(qt):
    return R('a', L_BASE + qt * 4, 4)


class Gen:
    def __init__(self, o):
        self.o = o
        self.ins = []
        self.vm = []
        self.ds = []
        self.landed = set()
        self.slot = {}
        self.reads_open = set()
        self.done_reading = set()
        self.next = {'K': 0, 'V': 0}
        self.nstamp = 0
        self.model = 0

    def emit(self, *xs):
        for x in xs:
            if isinstance(x, (list, tuple)):
                self.emit(*x)
                continue
            if callable(x.text):
                x.text = x.text()
            if x.kind in ('vmem', 'dma', 'store'):
                self.vm.append(x.tag)
            if x.kind == 'ds':
                self.ds.append(x.tag)
                if x.tag is not None and x.tag[0] in 'KVQ':
                    assert x.tag in self.landed, f'read of {x.tag} before it is visible'
                    self.reads_open.add(x.tag)
            self.ins.append(x)

    @staticmethod
    def behind(seq, tags, cap):
        last = max(i for i, t in enumerate(seq) if t in tags)
        for t in tags:
            assert t in seq, f'{t} never issued'
        return min(cap, len(seq) - 1 - last)

    def wait(self, vm=(), ds=None, own=()):
        def text():
            parts = []
            if vm:
                parts.append(f'vmcnt({self.behind(self.vm, vm, 63)})')
            if ds == 0:
                parts.append('lgkmcnt(0)')
            elif ds:
                parts.append(f'lgkmcnt({self.behind(self.ds, ds, 15)})')
            self.landed |= set(own)
            return 's_waitcnt ' + ' '.join(parts)
        return I(text, 'wait')

    def barrier(self, tiles, drained):
        def text():
            self.landed |= set(tiles)
            self.done_reading |= drained
            return 's_barrier' if not self.o.no_barrier else 's_nop 0'
        return I(text, 'barrier')

    def stamp(self):
        o = self.o
        if o.padfrom is not None:
            self.nstamp += 1
            return [raw('s_memrealtime s[94:95]', 'smem', ['s[94:95]'])] if self.nstamp == o.padfrom else []
        if not o.stamps:
            return []
        assert self.nstamp < 15
        r = R('s', S_STAMP + 2 * self.nstamp, 2)
        self.nstamp += 1
        return [raw(f'{o.timer} {r}', 'smem', [r])]

    def can_dma(self, kind, free):
        n = self.next[kind]
        if n >= NT:
            return False
        held = self.slot.get((kind, n % RING))
        return held is None or all(t in free for t in held)

    def dma_tile(self, kind):
        n = self.next[kind]
        self.next[kind] = n + 1
        self.slot[(kind, n % RING)] = [(kind, n)]
        base = (n % RING) * TILE + (VBASE if kind == 'V' else 0)
        srd = SK if kind == 'K' else SV
        so = f's{S_TILE + n}'
        fl = self.o.dma_flags
        return [salu('s_add_u32', 'm0', S_WB, base),
                dma(V_DKV, srd, so, 0, fl, tag=(kind, n)), dma(V_DKV, srd, so, 1024, fl, tag=(kind, n))]

    @staticmethod
    def q_place(h, qt):
        if h == 0:
            return (32768 if qt < 2 else 0) + (qt & 1) * 4096
        return 32768 + (qt & 1) * 4096

    def dma_q(self, h, qt):
        fl = self.o.q_flags
        out = [salu('s_add_u32', 'm0', S_WS, QOFF + self.q_place(h, qt)),
               salu('s_add_u32', S_T2, S_ROW[h], qt * 4096)]
        out += [dma(V_DQ[b >> 1], SQ, S_T2, b * 1024, fl, tag=('Q', h, qt)) for b in range(4)]
        return out

    def q_reads(self, h, qt):
        return [ds_read('ds_read_b128', Qf(h, qt, s), V_AQ, self.q_place(h, qt) + s * 256, tag=('Q', h, qt))
                for s in range(4)]

    def k_reads(self, n):
        base = (n % RING) * TILE
        return [ds_read('ds_read_b128', Kf(n, kt, s), V_AK, base + kt * 4096 + s * 256, tag=('K', n))
                for kt in range(2) for s in range(4)]

    def v_reads(self, n):
        base = (n % RING) * TILE
        return [ds_read('ds_read_b64_tr_b16', Vf(dt, u), V_AV[dt & 1], base + u * 4096 + (dt >> 1) * 256, tag=('V', n))
                for dt in range(8) for u in range(2)]

    def qk(self, n):
        h = n // 16
        return [mfma16(Sblk(n, qt, kt), Kf(n, kt, s), Qf(h, qt, s), Sblk(n, qt, kt) if s else '0')
                for qt in range(4) for kt in range(2) for s in range(4)]

    def pv(self, n):
        first = n % 16 == 0
        out = []
        for dt in range(8):
            for qt in range(4):
                out.append(mfma16(Oblk(qt, dt), Vf(dt), Pblk(n, qt), '0' if first else Oblk(qt, dt)))
            if dt < 4:
                out.append(mfma16(Lblk(dt), ONES, Pblk(n, dt), '0' if first else Lblk(dt)))
        return out

    def op_fma(self, n, e):
        return valu('v_fma_f32', Sel(n, e), Sel(n, e), S_C, V_MC[e // 8])

    def op_exp(self, n, e):
        return valu('v_exp_f32', Sel(n, e), Sel(n, e))

    def op_cvt(self, n, e):
        return valu('v_cvt_pk_bf16_f32', R('v', P_BASE + (n & 1) * 16 + e // 2), Sel(n, e - 1), Sel(n, e))

    def row_max(self, n, m, c, seed=None):
        out = []
        for k in range(4):
            for qt in range(4):
                e = 8 * qt
                if seed:
                    out.append(valu('v_max3_f32', m[qt], m[qt] if k else seed[qt], Sel(n, e + 2 * k), Sel(n, e + 2 * k + 1)))
                elif k == 0:
                    out.append(valu('v_max3_f32', m[qt], Sel(n, e), Sel(n, e + 1), Sel(n, e + 2)))
                elif k < 3:
                    out.append(valu('v_max3_f32', m[qt], m[qt], Sel(n, e + 2 * k + 1), Sel(n, e + 2 * k + 2)))
                else:
                    out.append(valu('v_max_f32', m[qt], m[qt], Sel(n, e + 7)))
        for sw in ('v_permlane32_swap_b32', 'v_permlane16_swap_b32'):
            out += [valu('v_mov_b32', c[qt], m[qt]) for qt in range(4)]
            out += [valu(sw, c[qt], m[qt]) for qt in range(4)]
            out += [valu('v_max_f32', m[qt], m[qt], c[qt]) for qt in range(4)]
        return out

    def sm_stream(self, n):
        def rnd(g, tile):
            r = []
            if tile == n and g < 32:
                r.append(self.op_fma(n, g))
            for lag in (1, 3):
                e, m = g - lag, n
                if e < 0:
                    e, m = e + 32, n - 1
                if m != tile or not 0 <= m < NT:
                    continue
                if lag == 1:
                    r.append(self.op_exp(m, e))
                elif e & 1:
                    r.append(self.op_cvt(m, e))
            return r
        out = []
        if self.o.no_valu:
            return out
        if n < NT and n % 16 == 0:
            for g in range(3):
                out += rnd(g, n - 1)
            out += self.row_max(n, V_T[0:4], V_T[4:8])
            nc = hex(f32bits(-C_SCALE))
            out += [valu('v_mul_f32', V_MC[qt], nc, V_T[qt]) for qt in range(4)]
            for g in range(32):
                out += rnd(g, n)
        else:
            for g in range(32 if n < NT else 3):
                a, b = rnd(g, n - 1), (rnd(g, n) if n < NT else [])
                out += b[:1] + a + b[1:]
        return out

    def epilogue(self, h, free):
        out = []
        l = V_T[0:4]
        ew = [V_EW] + [f'v{free + i}' for i in range(3)]
        er = [V_ER, f'v{free + 3}']
        out += [valu('v_xor_b32', ew[i], 32 * i, V_EW) for i in range(1, 4)]
        out += [valu('v_xor_b32', er[1], 64, V_ER)]
        out += [valu('v_accvgpr_read_b32', l[qt], f'a{L_BASE + 4 * qt}') for qt in range(4)]
        out += [valu('v_rcp_f32', f'v{V_RL + qt}', l[qt]) for qt in range(4)]
        out += [valu('v_add_f32', V_T[4], l[0], l[1]), valu('v_add_f32', V_T[5], l[2], l[3]),
                valu('v_mov_b32', V_T[6], hex(f32bits(L_LIMIT))), valu('v_add_f32', V_T[4], V_T[4], V_T[5]),
                valu('v_cmp_nlt_f32', 'vcc', V_T[4], V_T[6])]

        def front(qt):
            r = []
            rl = R('v', V_RL + (qt & 2), 2)
            sel = 'op_sel:[0,1] op_sel_hi:[1,1]' if qt & 1 else 'op_sel_hi:[1,0]'
            b0 = O_BASE + qt * 32
            for dt in range(8):
                b = b0 + dt * 4
                for k in range(2):
                    x = R('v', b + 2 * k, 2)
                    r.append(I(f'v_pk_mul_f32 {x}, {x}, {rl} {sel}', 'valu', [x], [x, f'v{V_RL + qt}']))
                r.append(valu('v_cvt_pk_bf16_f32', f'v{b0 + 2 * dt}', f'v{b}', f'v{b + 1}'))
                r.append(valu('v_cvt_pk_bf16_f32', f'v{b0 + 2 * dt + 1}', f'v{b + 2}', f'v{b + 3}'))
                r.append(ds_write('ds_write_b64', ew[dt & 3], R('v', b0 + 2 * dt, 2), (qt & 1) * 4096 + (dt >> 2) * 128,
                                  tag=('w', h, qt)))
            for i in range(4):
                r.append(ds_read('ds_read_b128', R('v', b0 + 16 + 4 * i, 4), er[i & 1], (qt & 1) * 4096 + i * 1024,
                                 tag=('r', h, qt)))
            return r

        def back(qt):
            b0 = O_BASE + qt * 32
            r = [salu('s_add_u32', S_T2, S_ROW[h], qt * 4096), self.wait(ds=[('r', h, qt)])]
            for i in range(4):
                r.append(bstore('buffer_store_dwordx4', R('v', b0 + 16 + 4 * i, 4), V_ST, SO, S_T2, i * 1024,
                                self.o.st_flags, tag=('O', h)))
            return r

        f = [front(qt) for qt in range(4)]
        out += f[0]
        out.append(salu('s_mov_b64', S_FLAG[h], 'vcc'))
        for qt in range(1, 4):
            out += f[qt][:20] + back(qt - 1) + f[qt][20:]
        out += back(3)
        return out

    def weave(self, mf, mem, vs, tail=None):
        G = len(mf)
        tail = tail or {}
        seq = list(vs)
        mem = list(mem)
        total = sum(x.cost for x in seq) + sum(x.cost for _, x in mem) + sum(x.cost for v in tail.values() for x in v)
        extra = max(0, total - 2 * G)
        cum = 0
        last = None
        for g in range(G):
            gap = []
            cap = 2 + ((extra * (g + 1)) // G - (extra * g) // G) - sum(x.cost for x in tail.get(g, []))
            lim = total * (g + 1) / G + 2
            c = 0
            while True:
                m_ok = mem and mem[0][0] <= g and c + 1 <= cap and not (
                    mem[0][1].kind == 'dma' and gap and 'm0' in gap[-1].wr)
                if seq and seq[0].kind == 'trans' and c + 2 <= cap and (c == 0 or not m_ok) and cum + 2 <= lim:
                    x = seq.pop(0)
                elif m_ok:
                    x = mem.pop(0)[1]
                elif seq and seq[0].kind != 'trans' and c + seq[0].cost <= cap and cum + 1 <= lim:
                    x = seq.pop(0)
                elif (len(seq) > 1 and seq[0].kind == 'trans' and seq[1].kind == 'valu' and c + 1 <= cap
                      and not (seq[1].rd | seq[1].wr) & (seq[0].wr | seq[0].rd) and cum + 1 <= lim):
                    x = seq.pop(1)
                else:
                    break
                gap.append(x)
                c += x.cost
                cum += x.cost
            if g == G - 1:
                gap += [x for _, x in mem] + seq
            gap += tail.get(g, [])
            cum += sum(x.cost for x in tail.get(g, []))
            self.model += max(16, 8 + 4 * sum(x.cost for x in gap))
            self.emit(mf[g], gap)

    def prologue(self):
        o = self.o
        e = self.emit
        t = V_T
        e(salu('s_cmp_ge_u32', 's2', 256), raw('s_cbranch_scc1 L_end'))
        e(raw('s_load_dwordx8 s[64:71], s[0:1], 0', 'smem', ['s[64:71]']))
        if o.stamps:
            e(raw('s_load_dwordx2 s[100:101], s[0:1], 40', 'smem', ['s[100:101]']))
            e(raw(f'{o.timer} s[98:99]', 'smem', ['s[98:99]']))
        if o.stamps or o.padfrom == 0:
            e(raw('s_memrealtime s[94:95]', 'smem', ['s[94:95]']))
        e(valu('v_lshrrev_b32', t[0], 6, 'v0'), valu('v_and_b32', 'v0', 63, 'v0'),
          valu('v_readfirstlane_b32', S_W, t[0]))
        e(valu('v_lshrrev_b32', t[1], 4, 'v0'), valu('v_bfe_u32', t[2], 'v0', 2, 2), valu('v_and_b32', t[3], 3, 'v0'),
          valu('v_lshlrev_b32', V_DQ[0], 6, t[1]), valu('v_lshl_add_u32', V_DQ[0], t[2], 8, V_DQ[0]),
          valu('v_lshl_add_u32', V_DQ[0], t[3], 4, V_DQ[0]), valu('v_xor_b32', V_DQ[1], 32, V_DQ[0]))
        e(salu('s_and_b32', 's3', 's2', 7), salu('s_lshr_b32', S_T, 's2', 3), salu('s_lshl_b32', 's3', 's3', 4),
          salu('s_lshr_b32', 's24', S_T, 1), salu('s_add_u32', 's3', 's3', 's24'), salu('s_lshl_b32', 's3', 's3', 18),
          salu('s_and_b32', S_T, S_T, 1), salu('s_lshl_b32', S_T, S_T, 16),
          salu('s_lshl_b32', 's24', S_W, 14), salu('s_add_u32', 's24', 's24', S_T), salu('s_add_u32', 's24', 's24', 's3'),
          salu('s_add_u32', 's25', 's24', HEAD_BYTES),
          salu('s_lshl_b32', S_WB, S_W, 11), salu('s_lshl_b32', S_WS, S_W, 13),
          salu('s_and_b32', S_T, S_W, 1), salu('s_lshl_b32', S_T, S_T, 5), salu('s_or_b32', S_T, S_T, S_WB))
        e(valu('v_xor_b32', V_DKV, S_T, V_DQ[0]))
        for n in range(2):
            e(salu('s_add_u32', f's{S_TILE + n}', 's3', n * TILE))
        e(raw('s_waitcnt lgkmcnt(0)', 'wait'))
        for srd, src in ((8, 66), (4, 64), (12, 68), (16, 70)):
            e(salu('s_mov_b32', f's{srd}', f's{src}'), salu('s_and_b32', f's{srd + 1}', f's{src + 1}', '0xffff'),
              salu('s_mov_b32', f's{srd + 2}', TENSOR_BYTES), salu('s_mov_b32', f's{srd + 3}', '0x20000'))
            if srd == 8:
                e(self.dma_tile('K'))
            if srd == 4:
                for qt in range(4):
                    e(self.dma_q(0, qt))
                e(self.dma_tile('K'))
        if o.cpf:
            e(raw('s_getpc_b64 s[72:73]', 'salu', ['s[72:73]']), label('L_pc'))
            e(salu('s_and_b32', 's73', 's73', '0xffff'), salu('s_mov_b32', 's74', 'L_slow_next-L_pc'),
              salu('s_mov_b32', 's75', '0x20000'))
            e(salu('s_bfe_u32', S_T, 's2', hex((1 << 16) | 3)), salu('s_lshl_b32', S_T, S_T, 15),
              salu('s_add_u32', S_T, S_T, S_WS), valu('v_lshlrev_b32', t[4], 7, 'v0'))
            e(bload('buffer_load_dword', t[11], t[4], 's[72:75]', S_T, 0, tag='code'))
        for w in range(4):
            self.slot[('V', 4 + w)] = [('Q', 0, 2), ('Q', 0, 3)]
        for n in range(2, NT):
            e(salu('s_add_u32', f's{S_TILE + n}', 's3', n * TILE))
        for k in (['K', 'V'] * 16)[:o.prefill]:
            if self.can_dma(k, set()):
                e(self.dma_tile(k))
        e(salu('s_mov_b32', S_C, hex(f32bits(C_SCALE))))
        e(valu('v_lshlrev_b32', V_ST, 4, 'v0'))
        e(valu('v_bfe_u32', t[4], 'v0', 2, 1), valu('v_bfe_u32', t[5], 'v0', 3, 1),
          valu('v_lshlrev_b32', t[6], 1, t[4]), valu('v_add_u32', t[7], t[6], t[5]),
          valu('v_lshlrev_b32', V_AK, 10, t[7]), valu('v_lshl_add_u32', V_AK, t[3], 6, V_AK),
          valu('v_xor_b32', t[6], t[6], t[1]), valu('v_lshl_add_u32', V_AK, t[6], 4, V_AK),
          salu('s_add_u32', S_T, S_WS, QOFF), valu('v_add_u32', V_AQ, S_T, V_AK))
        e(valu('v_lshl_add_u32', t[7], t[7], 2, t[3]), valu('v_and_b32', t[8], 7, t[7]),
          valu('v_lshrrev_b32', t[9], 5, 'v0'), valu('v_xor_b32', t[8], t[8], t[9]),
          valu('v_lshlrev_b32', V_EW, 8, t[7]), valu('v_lshl_add_u32', V_EW, t[8], 4, V_EW),
          valu('v_bfe_u32', t[8], 'v0', 4, 1), valu('v_lshl_add_u32', V_EW, t[8], 3, V_EW),
          salu('s_add_u32', S_T, S_WS, STAGE), valu('v_add_u32', V_EW, S_T, V_EW))
        e(valu('v_xor_b32', t[7], t[1], 'v0'), valu('v_and_b32', t[7], 15, t[7]),
          valu('v_lshlrev_b32', V_ER, 8, t[1]), valu('v_lshl_add_u32', V_ER, t[7], 4, V_ER),
          valu('v_add_u32', V_ER, S_T, V_ER))
        e(valu('v_lshlrev_b32', V_AV[0], 11, t[8]), valu('v_lshl_add_u32', V_AV[0], t[9], 10, V_AV[0]),
          valu('v_lshl_add_u32', V_AV[0], t[2], 6, V_AV[0]), valu('v_lshl_add_u32', V_AV[0], t[8], 5, V_AV[0]),
          valu('v_lshl_add_u32', V_AV[0], t[3], 3, V_AV[0]), valu('v_add_u32', V_AV[0], VBASE, V_AV[0]),
          valu('v_xor_b32', V_AV[1], 32, V_AV[0]))
        e(valu('v_mov_b32', t[7], '0x3f803f80'))
        for r in range(4):
            e(valu('v_accvgpr_write_b32', f'a{240 + r}', t[7]))

    def body(self):
        o = self.o
        e = self.emit
        Q = lambda h, qt: ('Q', h, qt)
        mf = self.qk(0)
        e(self.wait([('K', 0), Q(0, 0)], own=[Q(0, 0)]), self.barrier([('K', 0)], set()))
        e(self.stamp())
        e(self.q_reads(0, 0), self.k_reads(0))
        e(self.wait([Q(0, 1)], own=[Q(0, 1)]), self.q_reads(0, 1))
        e(self.wait(ds=[('K', 0)]), mf[0:8])
        e(self.wait([Q(0, 2)], own=[Q(0, 2)]), self.q_reads(0, 2))
        e(self.wait(ds=[Q(0, 1)]), mf[8:16])
        e(self.wait([Q(0, 3), ('K', 1)], own=[Q(0, 3)]), self.barrier([('K', 1)], {('K', 0)}), self.q_reads(0, 3))
        e(self.wait(ds=[Q(0, 2)]))
        kr = self.k_reads(1)
        for g in range(8):
            e(mf[16 + g], kr[g])
        e(self.wait(ds=[Q(0, 3)]), mf[24:32])
        qb_dma = {o.qstart + 2 * i: i for i in range(2)}
        qb_dma.update({o.qstart + o.qlag + 1 + 2 * i: 2 + i for i in range(2)})
        qb_read = {n + o.qlag: qt for n, qt in qb_dma.items()}
        assert max(qb_read) <= 14
        for n in range(NT + 1):
            e(comment(f'---- sub-iteration {n}'))
            mqk = self.qk(n + 1) if n + 1 < NT else []
            mpv = self.pv(n - 1) if n >= 1 else []
            vs = self.sm_stream(n)
            do_bar = n == 0 or (n % 2 == 1 and n < NT)
            tiles = []
            if do_bar:
                want = [('K', 2)] if n == 0 else [('V', n - 1), ('K', n + 2), ('V', n), ('K', n + 3)]
                tiles = [x for x in want if x[1] < NT]
            own = [Q(1, qb_read[n])] if n in qb_read else []
            e(self.stamp() if n in (1, 3, 5, 9, 13, 15, 17, 19, 23, 27, 31) else [])
            e(self.wait(tiles + own, 0, own))
            drained = set(self.reads_open)
            free = self.done_reading | (drained if do_bar else set())
            bar = self.barrier(tiles, drained) if do_bar else None
            if do_bar:
                self.reads_open = set()
            vr = self.v_reads(n - 1) if n >= 1 else []
            kr = self.k_reads(n + 2) if n + 2 < NT else []
            qr = self.q_reads(1, qb_read[n]) if n in qb_read else []
            dm = []
            for _ in range(o.catchup if n < 8 else 1):
                for k in ('K', 'V'):
                    if self.can_dma(k, free):
                        dm += self.dma_tile(k)
            if n in qb_dma:
                dm += self.dma_q(1, qb_dma[n])
            if o.no_dma:
                self.vm += [x.tag for x in dm if x.kind == 'dma']
                dm = []
            G1 = len(mqk)
            pw = self.wait(ds=0)
            if mqk and mpv:
                mem = [(0, bar)] if bar else []
                mem += [(1 + (i * 22) // 16, x) for i, x in enumerate(vr)]
                late = kr + qr
                mem += [(G1 + i, x) for i, x in enumerate(late)]
                g0 = G1 + len(late) + 2
                mem += [(g0 + (i * (66 - g0)) // len(dm), x) for i, x in enumerate(dm)]
                self.weave(mqk + mpv, mem, vs, {G1 - 1: [pw]})
            elif mqk:
                cut = len(vs) // 2
                self.weave(mqk, [(0, bar)], vs[:cut])
                rest, extra = vs[cut:], kr + dm
                while rest or extra:
                    e(extra[:1], rest[:2])
                    rest, extra = rest[2:], extra[1:]
            else:
                if bar:
                    e(bar)
                k = max(4, len(vs) - 48)
                head, vs = vs[:k], vs[k:]
                while vr or head:
                    e(vr[:1], head[:1])
                    vr, head = vr[1:], head[1:]
                e(pw)
                self.weave(mpv, [], vs)
            if n % 16 == 0 and n >= 16:
                e(comment(f'---- epilogue head {n // 16 - 1}'))
                e(self.stamp())
                e(self.epilogue(n // 16 - 1, P_BASE + 16))
        assert self.next == {'K': NT, 'V': NT}, self.next

    def slow_path(self):
        out = []
        e = out.append
        t = V_T
        VQ, VG = 'v2', 'v3'
        m = ['v4', 'v5', 'v6', 'v7']
        l = ['v8', 'v9', 'v10', 'v11']
        al = V_MC
        VS, VT = 96, 48
        e(label('L_slow'))
        e(valu('v_and_b32', t[0], 15, 'v0'))
        e(valu('v_lshrrev_b32', t[1], 4, 'v0'))
        e(valu('v_lshlrev_b32', VQ, 8, t[0]))
        e(valu('v_lshl_add_u32', VQ, t[1], 4, VQ))
        e(valu('v_lshlrev_b32', VG, 10, t[1]))
        e(valu('v_lshl_add_u32', VG, t[0], 1, VG))
        for qt in range(4):
            e(salu('s_add_u32', 's40', 's36', qt * 4096))
            for s in range(4):
                e(bload('buffer_load_dwordx4', Qf(0, qt, s), VQ, SQ, 's40', s * 64))
        for r in range(128):
            e(valu('v_mov_b32', f'v{O_BASE + r}', 0))
        for qt in range(4):
            e(valu('v_mov_b32', m[qt], '0xff800000'))
            e(valu('v_mov_b32', l[qt], 0))
        e(salu('s_mov_b32', 's39', 0))
        e(label('L_slow_tile'))
        e(salu('s_add_u32', 's40', 's38', 4096))
        for kt in range(2):
            for s in range(4):
                e(bload('buffer_load_dwordx4', Kf(0, kt, s), VQ, SK, 's40' if kt else 's38', s * 64))
        for dp in range(4):
            for dt in (2 * dp, 2 * dp + 1):
                for u in range(2):
                    for r in range(4):
                        e(bload('buffer_load_ushort', f'v{VT + (dt & 1) * 8 + u * 4 + r}', VG, SV,
                                's40' if u else 's38', r * 256 + dt * 32))
            e(raw('s_waitcnt vmcnt(0)', 'wait'))
            for dt in (2 * dp, 2 * dp + 1):
                for k in range(4):
                    b = VT + (dt & 1) * 8 + 2 * k
                    e(valu('v_lshl_or_b32', f'v{VS + dt * 4 + k}', f'v{b + 1}', 16, f'v{b}'))
        out += self.qk(0)
        mt = t[0:4]
        out += self.row_max(0, mt, t[4:8], seed=m)
        for qt in range(4):
            e(valu('v_sub_f32', al[qt], m[qt], mt[qt]))
            e(valu('v_mul_f32', al[qt], S_C, al[qt]))
            e(valu('v_exp_f32', al[qt], al[qt]))
            e(valu('v_mov_b32', m[qt], mt[qt]))
            e(valu('v_mul_f32', l[qt], l[qt], al[qt]))
            for r in range(8):
                x = Sel(0, 8 * qt + r)
                e(valu('v_sub_f32', x, x, m[qt]))
                e(valu('v_mul_f32', x, S_C, x))
                e(valu('v_exp_f32', x, x))
                e(valu('v_add_f32', l[qt], l[qt], x))
            for r in range(1, 8, 2):
                e(self.op_cvt(0, 8 * qt + r))
            for r in range(32):
                x = f'v{O_BASE + 32 * qt + r}'
                e(valu('v_mul_f32', x, x, al[qt]))
        for dt in range(8):
            for qt in range(4):
                e(mfma16(Oblk(qt, dt), R('v', VS + dt * 4, 4), Pblk(0, qt), Oblk(qt, dt)))
        e(nop(15))
        e(salu('s_add_u32', 's38', 's38', TILE))
        e(salu('s_add_u32', 's39', 's39', 1))
        e(salu('s_cmp_lt_u32', 's39', 16))
        e(raw('s_cbranch_scc1 L_slow_tile'))
        c = t[4:8]
        for sw in ('v_permlane32_swap_b32', 'v_permlane16_swap_b32'):
            out += [valu('v_mov_b32', c[qt], l[qt]) for qt in range(4)]
            out += [valu(sw, c[qt], l[qt]) for qt in range(4)]
            out += [valu('v_add_f32', l[qt], l[qt], c[qt]) for qt in range(4)]
        out += [valu('v_rcp_f32', al[qt], l[qt]) for qt in range(4)]
        e(valu('v_lshrrev_b32', t[1], 4, 'v0'))
        e(valu('v_lshlrev_b32', t[1], 3, t[1]))
        e(valu('v_sub_u32', VQ, VQ, t[1]))
        for qt in range(4):
            e(salu('s_add_u32', 's40', 's36', qt * 4096))
            for dt in range(8):
                b = O_BASE + (qt * 8 + dt) * 4
                for r in range(4):
                    e(valu('v_mul_f32', f'v{b + r}', f'v{b + r}', al[qt]))
                e(valu('v_cvt_pk_bf16_f32', f'v{b}', f'v{b}', f'v{b + 1}'))
                e(valu('v_cvt_pk_bf16_f32', f'v{b + 1}', f'v{b + 2}', f'v{b + 3}'))
                e(bstore('buffer_store_dwordx2', R('v', b, 2), VQ, SO, 's40', dt * 32))
        e(raw('s_waitcnt vmcnt(0)', 'wait'))
        e(raw('s_branch L_slow_next'))
        return out

    def tail(self):
        e = self.emit
        o = self.o
        if o.padfrom is not None:
            e(raw('s_waitcnt vmcnt(0)', 'wait'), self.stamp(), raw('s_waitcnt lgkmcnt(0)', 'wait'))
            e(salu('s_add_u32', 's94', 's94', 8000), label('L_pad'))
            e(raw('s_memrealtime s[96:97]', 'smem', ['s[96:97]']), raw('s_waitcnt lgkmcnt(0)', 'wait'))
            e(salu('s_sub_u32', 's96', 's96', 's94'), salu('s_cmp_lt_i32', 's96', 0), raw('s_cbranch_scc1 L_pad'))
        if o.stamps:
            e(raw('s_waitcnt vmcnt(0)', 'wait'), self.stamp())
            e(raw('s_memrealtime s[96:97]', 'smem', ['s[96:97]']))
            e(raw('s_getreg_b32 s42, hwreg(HW_REG_XCC_ID)', 'salu', ['s42']), raw('s_waitcnt lgkmcnt(0)', 'wait'))
            e(salu('s_lshl_b32', 's40', 's2', 2), salu('s_add_u32', 's40', 's40', S_W), salu('s_lshl_b32', 's40', 's40', 7))
            e(salu('s_mov_b32', 's44', 's100'), salu('s_and_b32', 's45', 's101', '0xffff'),
              salu('s_mov_b32', 's46', 1 << 20), salu('s_mov_b32', 's47', '0x20000'))
            e(valu('v_mov_b32', 'v30', 0))
            for k, s in enumerate(['s98'] + [f's{S_STAMP + 2 * k}' for k in range(self.nstamp)] + ['s94', 's96', 's42']):
                e(valu('v_mov_b32', 'v31', s), bstore('buffer_store_dword', 'v31', 'v30', 's[44:47]', 's40', 4 * k), nop(1))
        e(comment('rows whose exponent sum left the safe range are redone with the true running max'))
        e(salu('s_or_b64', 's[40:41]', S_FLAG[0], S_FLAG[1]), raw('s_cbranch_scc0 L_end'))
        e(raw('s_waitcnt vmcnt(0)', 'wait'), label('L_slow_next'))
        e(salu('s_cmp_lg_u64', S_FLAG[0], 0), raw('s_cbranch_scc0 L_slow_b'))
        e(salu('s_mov_b64', S_FLAG[0], 0), salu('s_mov_b32', 's36', 's24'), salu('s_mov_b32', 's38', 's3'))
        e(raw('s_branch L_slow'), label('L_slow_b'))
        e(salu('s_cmp_lg_u64', S_FLAG[1], 0), raw('s_cbranch_scc0 L_end'))
        e(salu('s_mov_b64', S_FLAG[1], 0), salu('s_mov_b32', 's36', 's25'), salu('s_add_u32', 's38', 's3', HEAD_BYTES))
        self.ins += self.slow_path()
        e(label('L_end'), raw('s_endpgm'))

    def build(self):
        self.prologue()
        self.body()
        nbody = len(self.ins)
        self.tail()
        n0 = sum(1 for x in self.ins[:nbody] if x.kind == 'nop')
        mark = self.ins[nbody]
        self.ins = fix_hazards(self.ins)
        n1 = sum(1 for x in self.ins[:self.ins.index(mark)] if x.kind == 'nop')
        assert check_hazards(self.ins) == 0
        print(f'instructions {len(self.ins)}, body nops inserted {n1 - n0}, woven model cycles {self.model}', file=sys.stderr)
        txt = HEADER
        txt += '; Generated by a scheduling script: persistent flash attention, one wave per SIMD.\n'
        txt += '; @launch grid=(256,1,1) block=(256,1,1) lds=163840\n'
        txt += '.amdgcn_target "amdgcn-amd-amdhsa--gfx950"\n.text\n'
        txt += f'.globl {NAME}_kernel\n.p2align 8\n.type {NAME}_kernel,@function\n{NAME}_kernel:\n'
        for x in self.ins:
            txt += ('' if x.kind == 'label' else '    ') + x.text + '\n'
        txt += '.fill 64, 4, 0xbf800000\n'
        txt += f'''.section .rodata,"a"
.p2align 6
.amdhsa_kernel {NAME}_kernel
  .amdhsa_next_free_vgpr 512
  .amdhsa_next_free_sgpr 102
  .amdhsa_accum_offset 256
  .amdhsa_group_segment_fixed_size 0
  .amdhsa_kernarg_size 48
  .amdhsa_user_sgpr_count 2
  .amdhsa_user_sgpr_kernarg_segment_ptr 1
  .amdhsa_system_sgpr_workgroup_id_x 1
  .amdhsa_float_denorm_mode_32 3
  .amdhsa_float_denorm_mode_16_64 3
.end_amdhsa_kernel
'''
        return txt


def main():
    p = argparse.ArgumentParser()
    p.add_argument('-o', default='k.s')
    p.add_argument('--prefill', type=int, default=4)
    p.add_argument('--catchup', type=int, default=2)
    p.add_argument('--qstart', type=int, default=3)
    p.add_argument('--qlag', type=int, default=4)
    p.add_argument('--stamps', action='store_true')
    p.add_argument('--padfrom', type=int, default=None)
    p.add_argument('--timer', default='s_memtime')
    p.add_argument('--cpf', type=int, default=1)
    p.add_argument('--no-valu', action='store_true')
    p.add_argument('--no-dma', action='store_true')
    p.add_argument('--no-barrier', action='store_true')
    p.add_argument('--dma-flags', default='')
    p.add_argument('--q-flags', default='')
    p.add_argument('--st-flags', default='')
    o = p.parse_args()
    open(o.o, 'w').write(Gen(o).build())


if __name__ == '__main__':
    main()
```
